```python
import torch

def _softmax(x, axis=-1):
    return torch.softmax(x, dim=axis)
def _gelu(x):
    return torch.nn.functional.gelu(x, approximate="tanh")
def _silu(x):
    return torch.nn.functional.silu(x)
def _sigmoid(x):
    return torch.sigmoid(x)
def _layernorm(x, axis=-1, eps=1e-5):
    m = x.mean(dim=axis, keepdim=True)
    v = x.var(dim=axis, keepdim=True, unbiased=False)
    return (x - m) / torch.sqrt(v + eps)
def _scatter_add(tgt, idx, src, axis=0):
    return tgt.clone().index_add_(axis, idx, src)
def _segment_sum(src, seg, n):
    out = torch.zeros((n,) + src.shape[1:], dtype=src.dtype)
    return out.index_add_(0, seg, src)
def _pad(x, pw):
    flat = tuple(v for pair in reversed(pw) for v in pair)
    return torch.nn.functional.pad(x, flat)

kernel_name = 'recurrent_scan__sliding_block_cached__geglu_ffn__decode'

def setup_inputs():

    _w = (lambda a: (lambda t: t.to(torch.bfloat16) if t.is_floating_point() else t)(torch.as_tensor(a)))
    def _A_setup():
        B, Sq, D = 8, 1, 512
        Hq, Hkv, Sk, Dh = 32, 8, 4096, 128
        assert Hq % Hkv == 0, (Hq, Hkv)
        return {
            "x": _w((lambda *s: torch.randn(*s, dtype=torch.bfloat16) * 0.05)(B, Sq, D)),
            "k_cache": _w((lambda *s: torch.randn(*s, dtype=torch.bfloat16) * 0.8)(B, Hkv, Sk, Dh)),
            "v_cache": _w((lambda *s: torch.randn(*s, dtype=torch.bfloat16) * 0.2)(B, Hkv, Sk, Dh)),
            "wq": _w((lambda *s: torch.randn(*s, dtype=torch.bfloat16) * 0.8)(D, Hq * Dh) * (D ** -0.5)),
            "wo": _w((lambda *s: torch.randn(*s, dtype=torch.bfloat16) * 0.2)(Hq * Dh, D) * ((Hq * Dh) ** -0.5)),
        }
    _A_in = _A_setup()

    def _B_setup():
        B, S, D, F = 8, 1, 512, 1792
        return {
            "x": _w((lambda *s: torch.randn(*s, dtype=torch.bfloat16) * 0.05)(B, S, D)),
            "w_gate": _w((lambda *s: torch.randn(*s, dtype=torch.bfloat16) * 0.1)(D, F)),
            "w_up": _w((lambda *s: torch.randn(*s, dtype=torch.bfloat16) * 0.1)(D, F)),
            "w_down": _w((lambda *s: torch.randn(*s, dtype=torch.bfloat16) * 0.1)(F, D)),
        }
    _B_in = _B_setup()

    return {
        "A_x": _A_in["x"],
        "A_k_cache": _A_in["k_cache"],
        "A_v_cache": _A_in["v_cache"],
        "A_wq": _A_in["wq"],
        "A_wo": _A_in["wo"],
        "B_x": _B_in["x"],
        "B_w_gate": _B_in["w_gate"],
        "B_w_up": _B_in["w_up"],
        "B_w_down": _B_in["w_down"],
    }

def reference(A_x, A_k_cache, A_v_cache, A_wq, A_wo, B_x, B_w_gate, B_w_up, B_w_down):
    def _A_ref(x, k_cache, v_cache, wq, wo):
        B, Sq, D = x.shape
        Hq, Dh = 32, 128
        Hkv, Sk = k_cache.shape[1], k_cache.shape[2]
        W = min(4096, max(256, Sk // 4))
        rep = Hq // Hkv
        q = (lambda x, *d: x.permute(*d))((x @ wq).reshape(B, Sq, Hq, Dh), 0, 2, 1, 3)
        k = (lambda x, n, axis: torch.repeat_interleave(x, n, dim=axis))(k_cache[:, :, Sk - W:, :], rep, axis=1)
        v = (lambda x, n, axis: torch.repeat_interleave(x, n, dim=axis))(v_cache[:, :, Sk - W:, :], rep, axis=1)
        scores = torch.einsum("bhqd,bhkd->bhqk", q, k) * (Dh ** -0.5)
        p = _softmax(scores, axis=-1)
        o = torch.einsum("bhqk,bhkd->bhqd", p, v)
        return (lambda x, *d: x.permute(*d))(o, 0, 2, 1, 3).reshape(B, Sq, Hq * Dh) @ wo

    def _B_ref(x, w_gate, w_up, w_down):
        return (_gelu(x @ w_gate) * (x @ w_up)) @ w_down

    x = A_x
    xn = _layernorm(x, axis=-1)
    s = _A_ref(xn, A_k_cache, A_v_cache, A_wq, A_wo)
    g = _silu(_B_ref(xn, B_w_gate, B_w_up, B_w_down))
    return x + s * g
```

```python
import re

NAME = 'recurrent_scan__sliding_block_cached__geglu_ffn__decode'

TRANS = ('v_exp_f32', 'v_log_f32', 'v_rcp_f32', 'v_rsq_f32', 'v_sqrt_f32', 'v_sin_f32', 'v_cos_f32')

def parse_reg(tok):
    tok = tok.strip()
    neg = tok.startswith('-')
    if neg: tok = tok[1:]
    if tok.startswith('abs(') and tok.endswith(')'): tok = tok[4:-1]
    if tok.startswith('|') and tok.endswith('|'): tok = tok[1:-1]
    m = re.fullmatch(r'([vas])\[(\d+):(\d+)\]', tok)
    if m:
        return {(m.group(1), i) for i in range(int(m.group(2)), int(m.group(3)) + 1)}
    m = re.fullmatch(r'([vas])(\d+)', tok)
    if m:
        return {(m.group(1), int(m.group(2)))}
    if tok == 'vcc': return {('s', 'vcc_lo'), ('s', 'vcc_hi')}
    if tok in ('vcc_lo', 'vcc_hi'): return {('s', tok)}
    if tok == 'exec': return {('s', 'exec_lo'), ('s', 'exec_hi')}
    if tok in ('exec_lo', 'exec_hi'): return {('s', tok)}
    if tok == 'm0': return {('s', 'm0')}
    return set()

def split_ops(rest):
    ops = []; depth = 0; cur = ''
    for ch in rest:
        if ch == '[': depth += 1
        if ch == ']': depth -= 1
        if ch == ',' and depth == 0:
            ops.append(cur.strip()); cur = ''
        else:
            cur += ch
    if cur.strip(): ops.append(cur.strip())
    return ops

class Ins:
    def __init__(self, text):
        self.text = text
        t = text.split(';')[0].strip()
        self.is_label = t.endswith(':')
        self.kind = None
        self.dst = set(); self.src = set()
        self.ws = 1
        self.dpp = False
        self.mn = ''
        if not t or self.is_label or t.startswith('.'):
            self.kind = 'none'; self.ws = 0
            return
        parts = t.split(None, 1)
        mn = parts[0]; rest = parts[1] if len(parts) > 1 else ''
        self.mn = mn
        ops = split_ops(rest)
        mods = ''
        if ops:
            last = ops[-1].split(None, 1)
            if len(last) > 1 and not ops[-1].startswith('hwreg'):
                ops[-1] = last[0]; mods = last[1]
        self.ops = ops; self.mods = mods
        R = [parse_reg(o) for o in ops]
        base = re.sub(r'_(e32|e64|dpp|sdwa)$', '', mn)
        self.base = base
        if mn == 's_nop':
            self.kind = 'salu'; self.ws = int(ops[0], 0) + 1
        elif mn.startswith('v_mfma'):
            self.kind = 'mfma'
            self.dst = R[0]; self.srcA = R[1]; self.srcB = R[2]; self.srcC = R[3]
            self.src = R[1] | R[2] | R[3]
            self.passes = 8 if '32x32' in mn else 4
        elif mn.startswith('v_'):
            self.kind = 'valu'
            self.dpp = ('row_' in mods) or ('quad_perm' in mods) or mn.endswith('_dpp')
            if base.startswith('v_permlane') :
                self.dst = R[0] | R[1]; self.src = R[0] | R[1]
            elif base.startswith('v_cmp'):
                self.dst = R[0]; self.src = set().union(*R[1:])
            elif base in ('v_readfirstlane_b32', 'v_readlane_b32'):
                self.dst = R[0]; self.src = set().union(*R[1:])
            elif base in ('v_add_co_u32', 'v_sub_co_u32'):
                self.dst = R[0] | R[1]; self.src = set().union(*R[2:])
            else:
                self.dst = R[0]; self.src = set().union(*R[1:]) if len(R) > 1 else set()
                if base.startswith('v_fmac') or base.startswith('v_pk_fmac') or base.startswith('v_dot2c'):
                    self.src |= R[0]
                if self.dpp and ('bank_mask:0xf' not in mods or 'row_mask:0xf' not in mods):
                    self.src |= R[0]
                if base == 'v_cndmask_b32' and len(ops) == 3:
                    self.src |= parse_reg('vcc')
            self.trans = base in TRANS
        elif mn.startswith('buffer_') or mn.startswith('global_'):
            self.kind = 'vmem'
            if 'load' in mn:
                self.dst = R[0]; self.src = set().union(*R[1:])
            elif 'store' in mn:
                if mn.startswith('buffer_'):
                    self.sdata = R[0]
                else:
                    self.sdata = R[1]
                self.src = set().union(*R)
                self.wide = ('x4' in mn or 'x3' in mn)
            else:
                self.src = set().union(*R) if R else set()
        elif mn.startswith('ds_'):
            self.kind = 'ds'
            if 'read' in mn or 'bpermute' in mn or 'swizzle' in mn:
                self.dst = R[0]; self.src = set().union(*R[1:])
            else:
                self.src = set().union(*R)
        elif mn.startswith('s_'):
            self.kind = 'salu'
            if mn.startswith('s_cmp') or mn.startswith('s_cbranch') or mn in ('s_branch', 's_waitcnt', 's_barrier', 's_endpgm', 's_sleep', 's_setprio', 's_setpc_b64'):
                self.src = set().union(*R) if R else set()
            else:
                self.dst = R[0] if R else set(); self.src = set().union(*R[1:]) if len(R) > 1 else set()
        else:
            raise ValueError('unknown instr ' + text)

def isv(r): return r[0] in ('v', 'a')
def iss(r): return r[0] == 's'

def need_ws(P, C):
    n = 0
    pdv = {r for r in P.dst if isv(r)}
    pds = {r for r in P.dst if iss(r)}
    if P.kind == 'valu':
        if pdv:
            if C.kind == 'valu' and C.dpp and (pdv & C.src): n = max(n, 2)
            if C.kind == 'valu' and C.base.startswith('v_permlane') and (pdv & (C.src | C.dst)): n = max(n, 2)
            if C.kind == 'mfma' and (pdv & C.src): n = max(n, 2)
            if C.kind == 'valu' and C.base in ('v_readfirstlane_b32', 'v_readlane_b32') and (pdv & C.src): n = max(n, 1)
            if getattr(P, 'trans', False) and C.kind in ('valu', 'mfma', 'vmem', 'ds') and (pdv & C.src): n = max(n, 1)
        if pds:
            if C.kind == 'valu' and (pds & C.src): n = max(n, 2)
            if C.kind == 'vmem' and (pds & C.src): n = max(n, 5)
            if C.kind == 'salu' and (pds & C.src): n = max(n, 1)
            if C.kind == 'valu' and C.base in ('v_readlane_b32',) and (pds & C.src): n = max(n, 4)
    if P.kind == 'mfma':
        p = P.passes
        raw = {4: 8, 8: 12}[p]
        if C.kind in ('valu', 'vmem', 'ds'):
            if P.dst & (C.src | C.dst): n = max(n, raw)
            if C.kind == 'valu' and (P.srcC & C.dst): n = max(n, {4: 3, 8: 7}[p])
        if C.kind == 'mfma':
            if P.dst & (C.srcA | C.srcB): n = max(n, raw)
            if P.dst & C.srcC:
                if P.dst == C.srcC and C.passes == p: pass
                else: n = max(n, {4: 6, 8: 10}[p])
            elif P.dst & C.dst:
                n = max(n, raw)
    if P.kind == 'vmem' and hasattr(P, 'sdata') and getattr(P, 'wide', False):
        if C.kind == 'valu' and (P.sdata & C.dst): n = max(n, 2)
        if C.kind in ('vmem', 'ds', 'mfma') and (P.sdata & C.dst): n = max(n, 1)
    return n

class Prog:
    def __init__(self):
        self.ins = []
        self.vmq = 0
        self.labn = 0
    def __call__(self, s):
        for l in s.split('\n'):
            l = l.strip()
            if not l: continue
            self.ins.append(l)
    def c(self, s):
        self.ins.append('; ' + s)
    def label(self, base='L'):
        self.labn += 1
        return '%s_%d' % (base, self.labn)
    def vm(self, s):
        self(s)
        self.vmq += 1
        return self.vmq
    def wait_vm(self, tok, extra=''):
        n = self.vmq - tok
        assert n >= 0
        n = min(n, 63)
        self('s_waitcnt vmcnt(%d)%s' % (n, extra))
    def finalize(self):
        out = []
        parsed = []
        nops = 0
        for l in self.ins:
            I = Ins(l) if not l.startswith(';') else None
            if I is None:
                out.append('    ' + l); continue
            if I.kind == 'none':
                out.append(l); parsed.append(I); continue
            need = 0
            dist = 0
            for P in reversed(parsed[-40:]):
                if P.kind == 'none': continue
                w = need_ws(P, I)
                if w > dist:
                    need = max(need, w - dist)
                dist += P.ws
                if dist > 20: break
            while need > 0:
                k = min(need, 16)
                nop = Ins('s_nop %d' % (k - 1))
                parsed.append(nop); out.append('    s_nop %d' % (k - 1))
                need -= k; nops += 1
            parsed.append(I); out.append('    ' + l)
        self.nops = nops
        return '\n'.join(out)

HDR = open('cdna_kernels/' + NAME + '.s.ref').read().split('\n')
HDR_COMMENTS = [l for l in HDR if l.startswith(';') and '@launch' not in l and 'Override' not in l and 'grid=ceil' not in l]

def wrap(body, grid, block, lds, vgpr, sgpr, accum, stamps=None, extra_comments=()):
    k = NAME + '_kernel'
    out = list(HDR_COMMENTS)
    out.append('; @launch grid=(%d,1,1) block=(%d,1,1) lds=%d' % (grid, block, lds))
    if stamps: out.append('; STAMPS %d %d' % stamps)
    for c in extra_comments: out.append('; ' + c)
    out.append('.amdgcn_target "amdgcn-amd-amdhsa--gfx950"')
    out.append('.text')
    out.append('.globl %s' % k)
    out.append('.p2align 8')
    out.append('.type %s,@function' % k)
    out.append('%s:' % k)
    out.append(body)
    out.append('.section .rodata,"a"')
    out.append('.p2align 6')
    out.append('.amdhsa_kernel %s' % k)
    out.append('  .amdhsa_next_free_vgpr %d' % vgpr)
    out.append('  .amdhsa_next_free_sgpr %d' % sgpr)
    out.append('  .amdhsa_accum_offset %d' % accum)
    out.append('  .amdhsa_group_segment_fixed_size 0')
    out.append('  .amdhsa_kernarg_size 96')
    out.append('  .amdhsa_user_sgpr_count 2')
    out.append('  .amdhsa_user_sgpr_kernarg_segment_ptr 1')
    out.append('  .amdhsa_system_sgpr_workgroup_id_x 1')
    out.append('  .amdhsa_float_denorm_mode_32 3')
    out.append('.end_amdhsa_kernel')
    return '\n'.join(out) + '\n'
```

```python
import sys, struct
from asmlib import *

def f2u(x): return struct.unpack('<I', struct.pack('<f', x))[0]

WS_A = 0x000000
WS_G = 0x100000
WS_S = 0x200000
WS_O = 0x300000
WS_STAMP = 0x8000000
L_XN = 0; XN_STRIDE = 1056
L_Q = 8704
L_MAX = 9728
L_LS = 9792
L_OP = 10240; OP_J = 1040
L_RED1 = 18688
L_RED2 = L_RED1 + 16384
LDS_BYTES = L_RED2 + 16384

S_W = 3
SRD_X, SRD_K, SRD_V, SRD_A, SRD_WO, SRD_WD, SRD_OUT, SRD_DBG, SRD_WS = 4, 8, 12, 16, 20, 24, 28, 32, 36
S_WQ = 40; S_WG = 44; S_WU = 46
S_H = 42; S_R = 43
S_K = 48; S_V = 49; S_A = 50; S_ASTR = 51; S_WO = 52; S_WD = 53
S_TAG = 54
S_PLO = 56; S_PHI = 57
S_PUB = 58; S_CNT = 59
S_T0 = 60
S_RET = 62
S_T2 = 64
S_T4 = 66; S_T5 = 67; S_T6 = 68; S_T7 = 69
S_QG = 70
S_HG = 71
S_H2 = 72
S_C = 73
S_NONCE = 74
S_MASK = 76
S_PUBG = 77; S_PUBS = 78; S_PUBO = 79
S_STAMP = 80

V_L = 0
V_KOFF = 1
V_VOFF = 2
V_T = 3
V_T1 = 4
V_T2 = 5
V_T3 = 6
V_XF = 7
V_GR = 8
V_OG = 12
V_VA = 16
V_VB = 48
V_BF = 80
V_ACC = 112
V_WO = 144
V_WD = 160
V_QF = 168
V_S = 176
V_HA = 180
V_AOFF = 182
V_PUB = 183
V_REDW = 184
V_REDR = 185
V_OUTOFF = 186
V_WOOFF = 187
V_WDOFF = 188
V_RL = 189
V_NONCE = 190
V_AF = 140
NV = 192

def gen(stamps=False, win=8, fname='out.s', dbg_stop=None):
    a = Prog()
    nst = [0]
    def stamp(i):
        if stamps:
            a('s_memrealtime s[%d:%d]' % (S_STAMP + 2*i, S_STAMP + 2*i + 1))
    K_T = []; V_Tk = []
    def issue_K(kk):
        t = a.vm('buffer_load_dwordx4 a[%d:%d], v%d, s[%d:%d], s%d offen nt' % (4*kk, 4*kk+3, V_KOFF, SRD_K, SRD_K+3, S_K))
        a('s_add_u32 s%d, s%d, 4096' % (S_K, S_K))
        K_T.append(t)
    def vreg(kk):
        return (V_VA + 4*kk) if kk < 8 else (V_VB + 4*(kk-8))
    def issue_V(kk):
        r = vreg(kk)
        t = a.vm('buffer_load_dwordx4 v[%d:%d], v%d, s[%d:%d], s%d offen nt' % (r, r+3, V_VOFF, SRD_V, SRD_V+3, S_V))
        a('s_add_u32 s%d, s%d, 4096' % (S_V, S_V))
        V_Tk.append(t)

    a('s_memrealtime s[%d:%d]' % (S_NONCE, S_NONCE+1))
    stamp(0)
    a('s_cmp_ge_u32 s2, 256')
    a('s_cbranch_scc1 L_end')
    a('s_load_dwordx2 s[%d:%d], s[0:1], 0' % (SRD_X, SRD_X+1))
    a('s_load_dwordx2 s[%d:%d], s[0:1], 24' % (S_WQ, S_WQ+1))
    a('s_load_dwordx4 s[%d:%d], s[0:1], 48' % (S_WG, S_WG+3))
    a('s_load_dwordx2 s[%d:%d], s[0:1], 8' % (SRD_K, SRD_K+1))
    a('s_load_dwordx2 s[%d:%d], s[0:1], 80' % (SRD_DBG, SRD_DBG+1))
    a('s_load_dwordx2 s[%d:%d], s[0:1], 16' % (SRD_V, SRD_V+1))
    a('s_load_dwordx2 s[%d:%d], s[0:1], 88' % (SRD_WS, SRD_WS+1))
    a('s_load_dwordx2 s[%d:%d], s[0:1], 32' % (SRD_WO, SRD_WO+1))
    a('s_load_dwordx2 s[%d:%d], s[0:1], 64' % (SRD_WD, SRD_WD+1))
    a('s_load_dwordx2 s[%d:%d], s[0:1], 72' % (SRD_OUT, SRD_OUT+1))
    a('v_lshrrev_b32 v%d, 6, v0' % V_T)
    a('v_readfirstlane_b32 s%d, v%d' % (S_W, V_T))
    a('v_lshrrev_b32 v%d, 5, v0' % V_T1)
    a('v_lshlrev_b32 v%d, 10, v%d' % (V_T1, V_T1))
    a('v_and_b32 v%d, 31, v0' % V_T2)
    a('v_lshl_add_u32 v%d, v%d, 4, v%d' % (V_T1, V_T2, V_T1))
    a('v_lshrrev_b32 v%d, 5, v0' % V_T3)
    a('v_mul_u32_u24 v%d, %d, v%d' % (V_T3, XN_STRIDE, V_T3))
    a('v_lshl_add_u32 v%d, v%d, 4, v%d' % (V_T3, V_T2, V_T3))
    a('v_and_b32 v%d, 63, v0' % V_L)
    for s, n in ((SRD_X, 8192), (SRD_K, 0x4000000), (SRD_V, 0x4000000), (SRD_WO, 0x400000), (SRD_WD, 1792*1024),
                 (SRD_OUT, 8192), (SRD_DBG, 256), (SRD_WS, 0x10000000 if stamps else 0x400000)):
        a('s_mov_b32 s%d, 0x%x' % (s+2, n))
        a('s_mov_b32 s%d, 0x00020000' % (s+3))
    a('s_mov_b32 s%d, 0x00020000' % (SRD_A+3))
    a('s_and_b32 s%d, s2, 7' % S_H)
    a('s_lshr_b32 s%d, s2, 3' % S_R)
    a('s_movk_i32 s%d, 3584' % S_ASTR)
    a('s_mov_b32 s%d, 0x1c0000' % (SRD_A+2))
    a('s_movk_i32 s%d, 128' % S_T4)
    a('s_cmp_lt_u32 s2, 128')
    a('s_cselect_b32 s%d, 8192, s%d' % (S_ASTR, S_ASTR))
    a('s_cselect_b32 s%d, 0x400000, s%d' % (SRD_A+2, SRD_A+2))
    a('s_cselect_b32 s%d, 0, s%d' % (S_T4, S_T4))
    a('s_cmp_ge_u32 s2, 184')
    a('s_cselect_b32 s%d, 184, s%d' % (S_T4, S_T4))
    a('s_cmp_ge_u32 s2, 240')
    a('s_cselect_b32 s%d, 0, s%d' % (SRD_A+2, SRD_A+2))
    a('s_sub_u32 s%d, s2, s%d' % (S_T4, S_T4))
    a('s_lshr_b32 s%d, s%d, 1' % (S_T4, S_T4))
    a('s_lshl_b32 s%d, s%d, 7' % (S_T4, S_T4))
    a('s_and_b32 s%d, s2, 1' % S_T5)
    a('s_lshl_b32 s%d, s%d, 2' % (S_T5, S_T5))
    a('s_add_u32 s%d, s%d, s%d' % (S_T5, S_T5, S_W))
    a('s_lshl_b32 s%d, s%d, 6' % (S_T5, S_T5))
    a('s_mul_i32 s%d, s%d, s%d' % (S_A, S_T5, S_ASTR))
    a('s_add_u32 s%d, s%d, s%d' % (S_A, S_A, S_T4))
    a('v_and_b32 v%d, 0x38, v%d' % (V_AOFF, V_L))
    a('v_mul_u32_u24 v%d, s%d, v%d' % (V_AOFF, S_ASTR, V_AOFF))
    a('v_and_b32 v%d, 7, v%d' % (V_T2, V_L))
    a('v_lshl_add_u32 v%d, v%d, 4, v%d' % (V_AOFF, V_T2, V_AOFF))
    a('v_mul_u32_u24 v%d, %d, v%d' % (V_T, XN_STRIDE, V_T2))
    a('v_and_b32 v%d, 0x38, v%d' % (V_QF, V_L))
    a('v_lshl_add_u32 v%d, v%d, 1, v%d' % (V_QF, V_QF, V_T))
    a('s_lshl_b32 s%d, s%d, 1' % (S_T5, S_T5))
    a('v_add_u32 v%d, s%d, v%d' % (V_QF, S_T5, V_QF))
    a('v_bfe_u32 v%d, v%d, 2, 2' % (V_KOFF, V_L))
    a('v_lshlrev_b32 v%d, 8, v%d' % (V_KOFF, V_KOFF))
    a('v_lshrrev_b32 v%d, 4, v%d' % (V_T, V_L))
    a('v_lshl_add_u32 v%d, v%d, 6, v%d' % (V_KOFF, V_T, V_KOFF))
    a('v_and_b32 v%d, 3, v%d' % (V_T, V_L))
    a('v_lshl_add_u32 v%d, v%d, 4, v%d' % (V_KOFF, V_T, V_KOFF))
    a('v_lshlrev_b32 v%d, 4, v%d' % (V_VOFF, V_L))
    a('s_lshr_b32 s%d, s%d, 2' % (S_T4, S_R))
    a('s_lshl_b32 s%d, s%d, 3' % (S_T4, S_T4))
    a('s_add_u32 s%d, s%d, s%d' % (S_T4, S_T4, S_H))
    a('s_lshl_b32 s%d, s%d, 20' % (S_K, S_T4))
    a('s_and_b32 s%d, s%d, 3' % (S_T4, S_R))
    a('s_lshl_b32 s%d, s%d, 16' % (S_T4, S_T4))
    a('s_add_u32 s%d, s%d, s%d' % (S_K, S_K, S_T4))
    a('s_lshl_b32 s%d, s%d, 10' % (S_T4, S_W))
    a('s_add_u32 s%d, s%d, s%d' % (S_K, S_K, S_T4))
    a('s_add_u32 s%d, s%d, 0x%x' % (S_K, S_K, 3072*256))
    a('s_mov_b32 s%d, s%d' % (S_V, S_K))
    a('s_waitcnt lgkmcnt(0)')
    stamp(1)
    a('s_cmp_lt_u32 s2, 128')
    a('s_cselect_b64 s[%d:%d], s[%d:%d], s[%d:%d]' % (SRD_A, SRD_A+1, S_WQ, S_WQ+1, S_WG, S_WG+1))
    a('s_cmp_ge_u32 s2, 184')
    a('s_cselect_b64 s[%d:%d], s[%d:%d], s[%d:%d]' % (SRD_A, SRD_A+1, S_WU, S_WU+1, SRD_A, SRD_A+1))
    X0 = V_VA
    tx0 = a.vm('buffer_load_dwordx4 v[%d:%d], v%d, s[%d:%d], 0 offen' % (X0, X0+3, V_T1, SRD_X, SRD_X+3))
    tx1 = a.vm('buffer_load_dwordx4 v[%d:%d], v%d, s[%d:%d], 0 offen offset:512' % (X0+4, X0+7, V_T1, SRD_X, SRD_X+3))
    W_T = []
    for kk in range(8):
        r = V_VB + 4*kk
        W_T.append(a.vm('buffer_load_dwordx4 v[%d:%d], v%d, s[%d:%d], s%d offen nt' % (r, r+3, V_AOFF, SRD_A, SRD_A+3, S_A)))
        if kk < 7: a('s_add_u32 s%d, s%d, s%d' % (S_A, S_A, S_ASTR))
    a('s_or_b32 s%d, s2, s%d' % (S_T4, S_W))
    a('s_cmp_lg_u32 s%d, 0' % S_T4)
    a('s_cbranch_scc1 L_nononce')
    a('s_or_b32 s%d, s%d, 1' % (S_T4, S_NONCE))
    a('v_mov_b32 v%d, s%d' % (V_T, S_T4))
    a('v_mov_b32 v%d, 0' % V_T2)
    a('s_mov_b64 exec, 1')
    a('buffer_store_dword v%d, v%d, s[%d:%d], 0 offen sc0 sc1' % (V_T, V_T2, SRD_DBG, SRD_DBG+3))
    a('s_mov_b64 exec, -1')
    a('L_nononce:')
    a('v_mov_b32 v%d, 0' % V_T2)
    tnonce = a.vm('buffer_load_dword v%d, v%d, s[%d:%d], 0 offen sc1' % (V_NONCE, V_T2, SRD_DBG, SRD_DBG+3))
    a('s_lshl_b32 s%d, s%d, 10' % (S_T4, S_H))
    a('s_and_b32 s%d, s%d, 7' % (S_T5, S_R))
    a('s_lshl_b32 s%d, s%d, 7' % (S_T5, S_T5))
    a('s_add_u32 s%d, s%d, s%d' % (S_T4, S_T4, S_T5))
    a('s_lshr_b32 s%d, s%d, 3' % (S_T5, S_R))
    a('s_lshl_b32 s%d, s%d, 2' % (S_T5, S_T5))
    a('s_add_u32 s%d, s%d, s%d' % (S_T4, S_T4, S_T5))
    a('v_and_b32 v%d, 7, v%d' % (V_OUTOFF, V_L))
    a('v_lshlrev_b32 v%d, 4, v%d' % (V_OUTOFF, V_OUTOFF))
    a('v_add_u32 v%d, s%d, v%d' % (V_OUTOFF, S_T4, V_OUTOFF))
    txf = a.vm('buffer_load_dword v%d, v%d, s[%d:%d], 0 offen' % (V_XF, V_OUTOFF, SRD_X, SRD_X+3))
    NK0 = 4
    for kk in range(NK0): issue_K(kk)

    a('s_mov_b32 s%d, 0x05040100' % S_PLO)
    a('s_mov_b32 s%d, 0x07060302' % S_PHI)
    a('s_mov_b32 s%d, 0xffff0000' % S_MASK)
    a('s_mov_b32 s%d, 0x%08x' % (S_C, f2u(128**-0.5 * 1.4426950408889634)))
    a('v_bfe_u32 v%d, v%d, 4, 1' % (V_REDW, V_L))
    a('v_lshlrev_b32 v%d, 13, v%d' % (V_REDW, V_REDW))
    a('v_and_b32 v%d, 15, v%d' % (V_T, V_L))
    a('v_lshl_add_u32 v%d, v%d, 4, v%d' % (V_REDW, V_T, V_REDW))
    a('s_lshl_b32 s%d, s%d, 8' % (S_T4, S_W))
    a('s_add_u32 s%d, s%d, %d' % (S_T4, S_T4, L_RED1))
    a('v_add_u32 v%d, s%d, v%d' % (V_REDW, S_T4, V_REDW))
    a('v_lshrrev_b32 v%d, 5, v%d' % (V_REDR, V_L))
    a('v_lshlrev_b32 v%d, 13, v%d' % (V_REDR, V_REDR))
    a('v_and_b32 v%d, 7, v%d' % (V_T, V_L))
    a('v_lshl_add_u32 v%d, v%d, 4, v%d' % (V_REDR, V_T, V_REDR))
    a('v_bfe_u32 v%d, v%d, 3, 2' % (V_T2, V_L))
    a('v_lshl_add_u32 v%d, v%d, 2, v%d' % (V_REDR, V_T2, V_REDR))
    a('s_lshl_b32 s%d, s%d, 11' % (S_T4, S_W))
    a('s_add_u32 s%d, s%d, %d' % (S_T4, S_T4, L_RED1))
    a('v_add_u32 v%d, s%d, v%d' % (V_REDR, S_T4, V_REDR))
    a('v_lshrrev_b32 v%d, 3, v%d' % (V_PUB, V_L))
    a('v_lshlrev_b32 v%d, 9, v%d' % (V_PUB, V_PUB))
    a('v_lshl_add_u32 v%d, v%d, 4, v%d' % (V_PUB, V_T, V_PUB))
    a('s_lshl_b32 s%d, s%d, 7' % (S_T4, S_W))
    a('v_add_u32 v%d, s%d, v%d' % (V_PUB, S_T4, V_PUB))
    a('s_lshl_b32 s%d, s2, 12' % S_PUB)
    a('s_and_b32 s%d, s%d, 7' % (S_T4, S_R))
    a('s_lshr_b32 s%d, s%d, 3' % (S_T5, S_R))
    a('s_lshl_b32 s%d, s%d, 2' % (S_T6, S_H))
    a('s_add_u32 s%d, s%d, s%d' % (S_T6, S_T6, S_T5))
    a('s_lshl_b32 s%d, s%d, 5' % (S_PUBS, S_T4))
    a('s_add_u32 s%d, s%d, s%d' % (S_PUBS, S_PUBS, S_T6))
    a('s_lshl_b32 s%d, s%d, 12' % (S_PUBS, S_PUBS))
    a('s_add_u32 s%d, s%d, 0x%x' % (S_PUBS, S_PUBS, WS_S))
    a('s_lshl_b32 s%d, s%d, 2' % (S_WO, S_T6))
    a('s_add_u32 s%d, s%d, s%d' % (S_WO, S_WO, S_W))
    a('s_lshl_b32 s%d, s%d, 15' % (S_WO, S_WO))
    a('s_lshl_b32 s%d, s%d, 7' % (S_T7, S_T4))
    a('s_add_u32 s%d, s%d, s%d' % (S_WO, S_WO, S_T7))
    a('s_lshl_b32 s%d, s%d, 3' % (S_T6, S_T5))
    a('s_add_u32 s%d, s%d, s%d' % (S_T6, S_T6, S_H))
    a('s_lshl_b32 s%d, s%d, 2' % (S_WD, S_T6))
    a('s_add_u32 s%d, s%d, s%d' % (S_WD, S_WD, S_W))
    a('s_lshl_b32 s%d, s%d, 14' % (S_WD, S_WD))
    a('s_add_u32 s%d, s%d, s%d' % (S_WD, S_WD, S_T7))
    a('s_lshl_b32 s%d, s%d, 5' % (S_PUBG, S_T4))
    a('s_add_u32 s%d, s%d, s%d' % (S_PUBG, S_PUBG, S_T6))
    a('s_lshl_b32 s%d, s%d, 12' % (S_PUBG, S_PUBG))
    a('s_add_u32 s%d, s%d, 0x%x' % (S_PUBG, S_PUBG, WS_G))
    a('s_min_u32 s%d, s%d, 27' % (S_T6, S_T6))
    a('s_lshl_b32 s%d, s%d, 13' % (S_HG, S_T6))
    a('s_add_u32 s%d, s%d, 0x%x' % (S_HG, S_HG, WS_A + 128*4096))
    a('s_lshl_b32 s%d, s%d, 16' % (S_QG, S_H))
    a('s_lshr_b32 s%d, s%d, 2' % (S_T6, S_R))
    a('s_lshl_b32 s%d, s%d, 9' % (S_T6, S_T6))
    a('s_add_u32 s%d, s%d, s%d' % (S_QG, S_QG, S_T6))
    a('s_lshl_b32 s%d, s%d, 11' % (S_H2, S_H))
    a('s_lshl_b32 s%d, s%d, 9' % (S_T6, S_T5))
    a('s_add_u32 s%d, s%d, s%d' % (S_H2, S_H2, S_T6))
    a('s_add_u32 s%d, s%d, 0x%x' % (S_H2, S_H2, WS_O))
    a('s_lshl_b32 s%d, s2, 11' % S_PUBO)
    a('s_add_u32 s%d, s%d, 0x%x' % (S_PUBO, S_PUBO, WS_O))
    a('v_bfe_u32 v%d, v%d, 3, 1' % (V_T2, V_L))
    a('v_lshrrev_b32 v%d, 4, v%d' % (V_T1, V_L))
    a('v_lshlrev_b32 v%d, 2, v%d' % (V_WOOFF, V_T2))
    a('v_add_u32 v%d, v%d, v%d' % (V_WOOFF, V_WOOFF, V_T1))
    a('v_lshlrev_b32 v%d, 11, v%d' % (V_WDOFF, V_WOOFF))
    a('v_lshlrev_b32 v%d, 12, v%d' % (V_WOOFF, V_WOOFF))
    a('v_lshl_add_u32 v%d, v%d, 4, v%d' % (V_WDOFF, V_T, V_WDOFF))
    a('v_lshl_add_u32 v%d, v%d, 4, v%d' % (V_WOOFF, V_T, V_WOOFF))

    F = V_VA + 8
    a.wait_vm(tx1)
    stamp(2)
    for k in range(8):
        a('v_lshlrev_b32 v%d, 16, v%d' % (F+2*k, X0+k))
        a('v_and_b32 v%d, s%d, v%d' % (F+2*k+1, S_MASK, X0+k))
    T = V_VA + 24
    def tree_sum(regs, dst, op='v_add_f32'):
        regs = list(regs)
        tmp = []
        for i in range(0, len(regs), 2):
            a('%s v%d, v%d, v%d' % (op, T + i//2, regs[i], regs[i+1])); tmp.append(T + i//2)
        while len(tmp) > 1:
            nt = []
            for i in range(0, len(tmp), 2):
                a('%s v%d, v%d, v%d' % (op, tmp[i], tmp[i], tmp[i+1])); nt.append(tmp[i])
            tmp = nt
        if tmp[0] != dst: a('v_mov_b32 v%d, v%d' % (dst, tmp[0]))
    def half_reduce(r, tmp, op='v_add_f32'):
        for n in (8, 4, 2, 1):
            a('%s_dpp v%d, v%d, v%d row_ror:%d row_mask:0xf bank_mask:0xf' % (op, r, r, r, n))
        a('v_mov_b32 v%d, v%d' % (tmp, r))
        a('v_permlane16_swap_b32 v%d, v%d' % (r, tmp))
        a('%s v%d, v%d, v%d' % (op, r, r, tmp))
    MEAN = X0; VAR = X0+1; TMP = X0+2; MB = X0+3; RS = X0+4
    tree_sum(range(F, F+16), T)
    half_reduce(T, TMP)
    a('v_mul_f32 v%d, 0x%08x, v%d' % (MEAN, f2u(1.0/512), T))
    for k in range(16):
        a('v_sub_f32 v%d, v%d, v%d' % (V_BF+k, F+k, MEAN))
    a('v_mul_f32 v%d, v%d, v%d' % (T, V_BF, V_BF))
    a('v_mul_f32 v%d, v%d, v%d' % (T+1, V_BF+1, V_BF+1))
    for k in range(2, 16):
        a('v_fmac_f32 v%d, v%d, v%d' % (T + (k & 1), V_BF+k, V_BF+k))
    a('v_add_f32 v%d, v%d, v%d' % (T, T, T+1))
    half_reduce(T, TMP)
    a('v_mul_f32 v%d, 0x%08x, v%d' % (VAR, f2u(1.0/512), T))
    def rnd_bf(r):
        a('v_cvt_pk_bf16_f32 v%d, v%d, v%d' % (r, r, r))
        a('v_lshlrev_b32 v%d, 16, v%d' % (r, r))
    a('v_mov_b32 v%d, v%d' % (MB, MEAN)); rnd_bf(MB)
    rnd_bf(VAR)
    a('v_add_f32 v%d, 0x%08x, v%d' % (VAR, f2u(1e-5), VAR)); rnd_bf(VAR)
    a('v_sqrt_f32 v%d, v%d' % (VAR, VAR)); rnd_bf(VAR)
    a('v_rcp_f32 v%d, v%d' % (RS, VAR))
    XN = V_BF + 16
    for k in range(8):
        a('v_sub_f32 v%d, v%d, v%d' % (F+2*k, F+2*k, MB))
        a('v_sub_f32 v%d, v%d, v%d' % (F+2*k+1, F+2*k+1, MB))
    for k in range(8):
        a('v_cvt_pk_bf16_f32 v%d, v%d, v%d' % (T+k, F+2*k, F+2*k+1))
    for k in range(8):
        a('v_lshlrev_b32 v%d, 16, v%d' % (F+2*k, T+k))
        a('v_and_b32 v%d, s%d, v%d' % (F+2*k+1, S_MASK, T+k))
    for k in range(16):
        a('v_mul_f32 v%d, v%d, v%d' % (F+k, F+k, RS))
    for k in range(8):
        a('v_cvt_pk_bf16_f32 v%d, v%d, v%d' % (XN+k, F+2*k, F+2*k+1))
    a('ds_write_b128 v%d, v[%d:%d]' % (V_T3, XN, XN+3))
    a('ds_write_b128 v%d, v[%d:%d] offset:512' % (V_T3, XN+4, XN+7))
    a('s_waitcnt lgkmcnt(0)')
    a('s_barrier')
    AF = V_S
    a('ds_read_b128 v[%d:%d], v%d' % (AF, AF+3, V_QF))
    stamp(3)

    nk = NK0
    for p in range(4):
        a.wait_vm(W_T[2*p+1])
        for m in range(4):
            for e in range(2):
                j = 2*m + e
                a('v_perm_b32 v%d, v%d, v%d, s%d' % (V_BF + 4*j + p, V_VB + 4*(2*p+1) + m, V_VB + 4*(2*p) + m, S_PHI if e else S_PLO))
        if nk < 16: issue_K(nk); nk += 1
    a('s_waitcnt lgkmcnt(0)')
    for j in range(8):
        a('v_mfma_f32_16x16x32_bf16 v[%d:%d], v[%d:%d], v[%d:%d], 0' % (V_ACC+4*j, V_ACC+4*j+3, AF, AF+3, V_BF+4*j, V_BF+4*j+3))
    while nk < NK0 + win: issue_K(nk); nk += 1
    a.wait_vm(tnonce)
    a('s_mov_b32 s%d, 20000' % S_CNT)
    a('L_nonce:')
    a('v_readfirstlane_b32 s%d, v%d' % (S_TAG, V_NONCE))
    a('s_cmp_lg_u32 s%d, 0' % S_TAG)
    a('s_cbranch_scc1 L_nonce_ok')
    a('s_sub_u32 s%d, s%d, 1' % (S_CNT, S_CNT))
    a('s_cbranch_scc1 L_nonce_ok')
    a('v_mov_b32 v%d, 0' % V_T2)
    a('buffer_load_dword v%d, v%d, s[%d:%d], 0 offen sc1' % (V_NONCE, V_T2, SRD_DBG, SRD_DBG+3))
    a('s_waitcnt vmcnt(0)')
    a('s_branch L_nonce')
    a('L_nonce_ok:')
    a('s_xor_b32 s%d, s%d, 0x5bd1e995' % (S_TAG+1, S_TAG))
    a('v_mov_b32 v%d, s%d' % (V_GR+2, S_TAG))
    a('v_mov_b32 v%d, s%d' % (V_GR+3, S_TAG+1))
    a('v_mov_b32 v%d, s%d' % (V_OG+3, S_TAG))

    def red_publish(pub_sreg, tmpbase):
        a('s_mov_b32 exec_lo, 0x00ff00ff')
        a('s_mov_b32 exec_hi, 0xff00ff00')
        for j in range(8):
            a('ds_write_b128 v%d, v[%d:%d] offset:%d' % (V_REDW, V_ACC+4*j, V_ACC+4*j+3, j*1024))
        a('s_mov_b64 exec, -1')
        a('s_waitcnt lgkmcnt(0)')
        a('s_barrier')
        R = tmpbase
        a('v_add_u32 v%d, 1024, v%d' % (V_T, V_REDR))
        for p in range(4):
            a('ds_read2_b32 v[%d:%d], v%d offset0:%d offset1:%d' % (R+2*p, R+2*p+1, V_REDR, 64*p, 64*p+32))
        for p in range(4):
            a('ds_read2_b32 v[%d:%d], v%d offset0:%d offset1:%d' % (R+8+2*p, R+8+2*p+1, V_T, 64*p, 64*p+32))
        a('s_waitcnt lgkmcnt(4)')
        for k in range(4): a('v_add_f32 v%d, v%d, v%d' % (R+2*k, R+2*k, R+2*k+1))
        a('v_add_f32 v%d, v%d, v%d' % (R, R, R+2))
        a('v_add_f32 v%d, v%d, v%d' % (R+4, R+4, R+6))
        a('v_add_f32 v%d, v%d, v%d' % (V_GR, R, R+4))
        a('s_waitcnt lgkmcnt(0)')
        R2 = R + 8
        for k in range(4): a('v_add_f32 v%d, v%d, v%d' % (R2+2*k, R2+2*k, R2+2*k+1))
        a('v_add_f32 v%d, v%d, v%d' % (R2, R2, R2+2))
        a('v_add_f32 v%d, v%d, v%d' % (R2+4, R2+4, R2+6))
        a('v_add_f32 v%d, v%d, v%d' % (V_GR+1, R2, R2+4))
        return a.vm('buffer_store_dwordx4 v[%d:%d], v%d, s[%d:%d], s%d offen sc1' % (V_GR, V_GR+3, V_PUB, SRD_WS, SRD_WS+3, pub_sreg))
    red_publish(S_PUB, V_BF)
    stamp(4)

    while nk < 16:
        a.wait_vm(K_T[nk - win])
        issue_K(nk); nk += 1
    QG0 = V_BF; QG1 = V_BF + 4
    a('v_lshrrev_b32 v%d, 5, v%d' % (V_T, V_L))
    a('s_lshl_b32 s%d, s%d, 1' % (S_T4, S_W))
    a('v_add_u32 v%d, s%d, v%d' % (V_T, S_T4, V_T))
    a('v_and_b32 v%d, 31, v%d' % (V_T1, V_L))
    a('v_lshlrev_b32 v%d, 13, v%d' % (V_T2, V_T))
    a('v_lshl_add_u32 v%d, v%d, 4, v%d' % (V_AOFF, V_T1, V_T2))
    a('v_lshlrev_b32 v%d, 7, v%d' % (V_T, V_T))
    a('v_and_b32 v%d, 7, v%d' % (V_T2, V_L))
    a('v_lshl_add_u32 v%d, v%d, 4, v%d' % (V_T, V_T2, V_T))
    a('v_bfe_u32 v%d, v%d, 3, 2' % (V_T2, V_L))
    a('v_lshl_add_u32 v%d, v%d, 2, v%d' % (V_T3, V_T2, V_T))
    a('v_add_u32 v%d, %d, v%d' % (V_T3, L_Q, V_T3))
    a('s_add_u32 s%d, s%d, 4096' % (S_T7, S_QG))
    a.wait_vm(K_T[16 - win // 2 - 1] if win > 1 else K_T[15])
    def q_issue():
        t0 = a.vm('buffer_load_dwordx4 v[%d:%d], v%d, s[%d:%d], s%d offen sc1' % (QG0, QG0+3, V_AOFF, SRD_WS, SRD_WS+3, S_QG))
        t1 = a.vm('buffer_load_dwordx4 v[%d:%d], v%d, s[%d:%d], s%d offen sc1' % (QG1, QG1+3, V_AOFF, SRD_WS, SRD_WS+3, S_T7))
        return t1
    tq = q_issue()
    HG = V_ACC
    a('v_and_b32 v%d, 7, v%d' % (V_T, V_L))
    a('v_lshlrev_b32 v%d, 9, v%d' % (V_T, V_T))
    a('v_lshrrev_b32 v%d, 4, v%d' % (V_T1, V_L))
    a('v_lshl_add_u32 v%d, v%d, 7, v%d' % (V_T, V_T1, V_T))
    a('v_bfe_u32 v%d, v%d, 3, 1' % (V_T1, V_L))
    a('v_lshl_add_u32 v%d, v%d, 4, v%d' % (V_T, V_T1, V_T))
    a('s_lshl_b32 s%d, s%d, 5' % (S_T4, S_W))
    a('v_add_u32 v%d, s%d, v%d' % (V_T1, S_T4, V_T))
    nv = 0
    NV0 = win
    for kk in range(NV0): issue_V(kk); nv += 1
    stamp(5)
    a.wait_vm(tq)
    a('s_mov_b32 s%d, 20000' % S_CNT)
    a('L_q:')
    a('v_cmp_eq_u64 vcc, s[%d:%d], v[%d:%d]' % (S_TAG, S_TAG+1, QG0+2, QG0+3))
    a('v_cmp_eq_u64 s[%d:%d], s[%d:%d], v[%d:%d]' % (S_T0, S_T0+1, S_TAG, S_TAG+1, QG1+2, QG1+3))
    a('s_and_b64 vcc, vcc, s[%d:%d]' % (S_T0, S_T0+1))
    a('s_cmp_eq_u64 vcc, -1')
    a('s_cbranch_scc1 L_q_ok')
    a('s_sub_u32 s%d, s%d, 1' % (S_CNT, S_CNT))
    a('s_cbranch_scc1 L_q_ok')
    a('buffer_load_dwordx4 v[%d:%d], v%d, s[%d:%d], s%d offen sc1' % (QG0, QG0+3, V_AOFF, SRD_WS, SRD_WS+3, S_QG))
    a('buffer_load_dwordx4 v[%d:%d], v%d, s[%d:%d], s%d offen sc1' % (QG1, QG1+3, V_AOFF, SRD_WS, SRD_WS+3, S_T7))
    a('s_waitcnt vmcnt(0)')
    a('s_branch L_q')
    a('L_q_ok:')
    a('v_add_f32 v%d, v%d, v%d' % (QG0, QG0, QG1))
    a('v_add_f32 v%d, v%d, v%d' % (QG0+1, QG0+1, QG1+1))
    a('v_cvt_pk_bf16_f32 v%d, v%d, v%d' % (QG0, QG0, QG0+1))
    a('ds_write_b32 v%d, v%d' % (V_T3, QG0))
    a('v_and_b32 v%d, 3, v%d' % (V_T, V_L))
    a('v_lshlrev_b32 v%d, 8, v%d' % (V_T, V_T))
    a('v_lshrrev_b32 v%d, 4, v%d' % (V_T2, V_L))
    a('v_lshl_add_u32 v%d, v%d, 6, v%d' % (V_T, V_T2, V_T))
    a('v_bfe_u32 v%d, v%d, 2, 2' % (V_T2, V_L))
    a('v_lshl_add_u32 v%d, v%d, 4, v%d' % (V_T, V_T2, V_T))
    a('s_waitcnt lgkmcnt(0)')
    a('s_barrier')
    a('ds_read_b128 v[%d:%d], v%d offset:%d' % (V_QF, V_QF+3, V_T, L_Q))
    th = []
    a('s_add_u32 s40, s%d, 4096' % (S_HG))
    a('s_add_u32 s41, s%d, %d' % (S_HG, 56*4096))
    a('s_add_u32 s44, s%d, %d' % (S_HG, 57*4096))
    HG2 = V_WO
    hs = [S_HG, 40, 41, 44]
    for k in range(4):
        th.append(a.vm('buffer_load_dwordx4 v[%d:%d], v%d, s[%d:%d], s%d offen sc1' % (HG2+4*k, HG2+4*k+3, V_T1, SRD_WS, SRD_WS+3, hs[k])))
    stamp(6)
    a('s_waitcnt lgkmcnt(0)')
    D = V_BF
    for kk in range(16):
        a('v_mfma_f32_16x16x32_bf16 v[%d:%d], a[%d:%d], v[%d:%d], 0' % (D+4*kk, D+4*kk+3, 4*kk, 4*kk+3, V_QF, V_QF+3))
    for t in range(4):
        for st in range(3):
            c = (t + 1 + st) & 3
            n = 4 * ((t - c) % 4)
            for m in range(4):
                kk = 4*m + t
                s1 = (D + 4*kk + t) if st == 0 else (V_S + m)
                a('v_add_f32_dpp v%d, v%d, v%d row_ror:%d row_mask:0xf bank_mask:0x%x' % (V_S+m, D+4*kk+c, s1, n, 1 << t))
    MX = V_T
    a('v_max3_f32 v%d, v%d, v%d, v%d' % (MX, V_S, V_S+1, V_S+2))
    a('v_max_f32 v%d, v%d, v%d' % (MX, MX, V_S+3))
    def full_reduce(r, tmp, op):
        for n in (4, 8):
            a('%s_dpp v%d, v%d, v%d row_ror:%d row_mask:0xf bank_mask:0xf' % (op, r, r, r, n))
        a('v_mov_b32 v%d, v%d' % (tmp, r))
        a('v_permlane16_swap_b32 v%d, v%d' % (r, tmp))
        a('%s v%d, v%d, v%d' % (op, r, r, tmp))
        a('v_mov_b32 v%d, v%d' % (tmp, r))
        a('v_permlane32_swap_b32 v%d, v%d' % (r, tmp))
        a('%s v%d, v%d, v%d' % (op, r, r, tmp))
    full_reduce(MX, V_T2, 'v_max_f32')
    a('v_and_b32 v%d, 3, v%d' % (V_T2, V_L))
    a('v_lshlrev_b32 v%d, 4, v%d' % (V_T2, V_T2))
    a('s_lshl_b32 s%d, s%d, 2' % (S_T4, S_W))
    a('v_add_u32 v%d, s%d, v%d' % (V_T3, S_T4, V_T2))
    a('s_mov_b64 exec, 15')
    a('ds_write_b32 v%d, v%d offset:%d' % (V_T3, MX, L_MAX))
    a('s_mov_b64 exec, -1')
    a('s_waitcnt lgkmcnt(0)')
    a('s_barrier')
    MM = V_BF
    a('ds_read_b128 v[%d:%d], v%d offset:%d' % (MM, MM+3, V_T2, L_MAX))
    a('v_bfe_u32 v%d, v%d, 3, 2' % (V_RL, V_L))
    a('v_lshlrev_b32 v%d, 4, v%d' % (V_RL, V_RL))
    a('ds_read_b128 v[%d:%d], v%d offset:%d' % (MM+4, MM+7, V_RL, L_MAX))
    a('s_waitcnt lgkmcnt(0)')
    a('v_max3_f32 v%d, v%d, v%d, v%d' % (MM, MM, MM+1, MM+2))
    a('v_max_f32 v%d, v%d, v%d' % (MM, MM, MM+3))
    a('v_mul_f32 v%d, s%d, v%d' % (MM, S_C, MM))
    a('v_max3_f32 v%d, v%d, v%d, v%d' % (MM+4, MM+4, MM+5, MM+6))
    a('v_max_f32 v%d, v%d, v%d' % (MM+4, MM+4, MM+7))
    a('v_mul_f32 v%d, s%d, v%d' % (V_OG+2, S_C, MM+4))
    for m in range(4):
        a('v_fma_f32 v%d, v%d, s%d, -v%d' % (V_S+m, V_S+m, S_C, MM))
    for m in range(4):
        a('v_exp_f32 v%d, v%d' % (V_S+m, V_S+m))
    a('v_add_f32 v%d, v%d, v%d' % (MX, V_S, V_S+1))
    a('v_add_f32 v%d, v%d, v%d' % (MM+1, V_S+2, V_S+3))
    a('v_add_f32 v%d, v%d, v%d' % (MX, MX, MM+1))
    full_reduce(MX, MM+1, 'v_add_f32')
    a('s_mov_b64 exec, 15')
    a('ds_write_b32 v%d, v%d offset:%d' % (V_T3, MX, L_LS))
    a('s_mov_b64 exec, -1')
    PF = V_QF
    for m in range(4):
        a('v_mov_b32_dpp v%d, v%d row_ror:12 row_mask:0xf bank_mask:0xf' % (MM+4+m, V_S+m))
    for m in range(4):
        a('v_cvt_pk_bf16_f32 v%d, v%d, v%d' % (PF+2*m, V_S+m, MM+4+m))
    for m in range(4):
        a('v_mov_b32_dpp v%d, v%d row_ror:8 row_mask:0xf bank_mask:0xf' % (PF+2*m+1, PF+2*m))
    a('s_waitcnt lgkmcnt(0)')
    a('s_barrier')
    a('ds_read_b128 v[%d:%d], v%d offset:%d' % (MM, MM+3, V_RL, L_LS))
    a('s_waitcnt lgkmcnt(0)')
    a('v_add_f32 v%d, v%d, v%d' % (MM, MM, MM+1))
    a('v_add_f32 v%d, v%d, v%d' % (MM+2, MM+2, MM+3))
    a('v_add_f32 v%d, v%d, v%d' % (MM, MM, MM+2))
    a('v_log_f32 v%d, v%d' % (MM+1, MM))
    a('v_rcp_f32 v%d, v%d' % (V_RL, MM))
    a('v_add_f32 v%d, v%d, v%d' % (V_OG+2, V_OG+2, MM+1))
    stamp(7)

    a.wait_vm(th[3])
    a('s_mov_b32 s%d, 20000' % S_CNT)
    a('L_h:')
    a('v_cmp_eq_u64 vcc, s[%d:%d], v[%d:%d]' % (S_TAG, S_TAG+1, HG2+2, HG2+3))
    for k in range(1, 4):
        a('v_cmp_eq_u64 s[%d:%d], s[%d:%d], v[%d:%d]' % (S_T0, S_T0+1, S_TAG, S_TAG+1, HG2+4*k+2, HG2+4*k+3))
        a('s_and_b64 vcc, vcc, s[%d:%d]' % (S_T0, S_T0+1))
    a('s_cmp_eq_u64 vcc, -1')
    a('s_cbranch_scc1 L_h_ok')
    a('s_sub_u32 s%d, s%d, 1' % (S_CNT, S_CNT))
    a('s_cbranch_scc1 L_h_ok')
    for k in range(4):
        a('buffer_load_dwordx4 v[%d:%d], v%d, s[%d:%d], s%d offen sc1' % (HG2+4*k, HG2+4*k+3, V_T1, SRD_WS, SRD_WS+3, hs[k]))
    a('s_waitcnt vmcnt(0)')
    a('s_branch L_h')
    a('L_h_ok:')
    GA = V_BF; UP = V_BF+2; TT = V_BF+4
    for e in range(2):
        a('v_add_f32 v%d, v%d, v%d' % (GA+e, HG2+e, HG2+4+e))
        a('v_add_f32 v%d, v%d, v%d' % (UP+e, HG2+8+e, HG2+12+e))
    def rnd_pair(r0, r1, tmp):
        a('v_cvt_pk_bf16_f32 v%d, v%d, v%d' % (tmp, r0, r1))
        a('v_lshlrev_b32 v%d, 16, v%d' % (r0, tmp))
        a('v_and_b32 v%d, s%d, v%d' % (r1, S_MASK, tmp))
    rnd_pair(GA, GA+1, TT); rnd_pair(UP, UP+1, TT+1)
    k1 = -2.0 * 1.4426950408889634 * 0.7978845608028654
    k3 = k1 * 0.044715
    a('s_mov_b32 s%d, 0x%08x' % (S_T4, f2u(k1)))
    a('s_mov_b32 s%d, 0x%08x' % (S_T5, f2u(k3)))
    for e in range(2):
        a('v_mul_f32 v%d, v%d, v%d' % (TT+2+e, GA+e, GA+e))
        a('v_mov_b32 v%d, s%d' % (TT+4+e, S_T4))
        a('v_fma_f32 v%d, v%d, s%d, v%d' % (TT+2+e, TT+2+e, S_T5, TT+4+e))
        a('v_mul_f32 v%d, v%d, v%d' % (TT+2+e, TT+2+e, GA+e))
        a('v_exp_f32 v%d, v%d' % (TT+2+e, TT+2+e))
        a('v_add_f32 v%d, 1.0, v%d' % (TT+2+e, TT+2+e))
        a('v_rcp_f32 v%d, v%d' % (TT+2+e, TT+2+e))
        a('v_mul_f32 v%d, v%d, v%d' % (GA+e, GA+e, TT+2+e))
    rnd_pair(GA, GA+1, TT)
    for e in range(2):
        a('v_mul_f32 v%d, v%d, v%d' % (GA+e, GA+e, UP+e))
    a('v_cvt_pk_bf16_f32 v%d, v%d, v%d' % (V_HA, GA, GA+1))
    a('v_mov_b32 v%d, 0' % (V_HA+1))

    WO_T = []; WD_T = []
    def issue_WO(kk):
        WO_T.append(a.vm('buffer_load_dwordx4 v[%d:%d], v%d, s[%d:%d], s%d offen offset:%d nt' % (V_WO+4*kk, V_WO+4*kk+3, V_WOOFF, SRD_WO, SRD_WO+3, S_WO, kk*1024)))
    def issue_WD(kk):
        WD_T.append(a.vm('buffer_load_dwordx4 v[%d:%d], v%d, s[%d:%d], s%d offen offset:%d nt' % (V_WD+4*kk, V_WD+4*kk+3, V_WDOFF, SRD_WD, SRD_WD+3, S_WD, kk*1024)))
    rest = [('V', k) for k in range(nv, 16)] + [('WD', 0), ('WD', 1)] + [('WO', k) for k in range(4)]
    def issue_next(n):
        for _ in range(n):
            if not rest: return
            kind, k = rest.pop(0)
            if kind == 'V': issue_V(k)
            elif kind == 'WD': issue_WD(k)
            else: issue_WO(k)
    V_OPR = V_AOFF
    a('v_and_b32 v%d, 1, v%d' % (V_T, V_L))
    a('v_mul_u32_u24 v%d, %d, v%d' % (V_T, 4*OP_J, V_T))
    a('v_bfe_u32 v%d, v%d, 1, 2' % (V_T2, V_L))
    a('v_lshl_add_u32 v%d, v%d, 4, v%d' % (V_T, V_T2, V_T))
    a('v_bfe_u32 v%d, v%d, 3, 2' % (V_T2, V_L))
    a('v_lshl_add_u32 v%d, v%d, 2, v%d' % (V_T, V_T2, V_T))
    a('s_lshl_b32 s%d, s%d, 6' % (S_T4, S_W))
    a('s_add_u32 s%d, s%d, %d' % (S_T4, S_T4, L_OP))
    a('v_add_u32 v%d, s%d, v%d' % (V_OPR, S_T4, V_T))
    V_OPW = V_T3
    a('s_lshl_b32 s%d, s%d, 8' % (S_T4, S_W))
    a('s_add_u32 s%d, s%d, %d' % (S_T4, S_T4, L_OP))
    a('v_lshlrev_b32 v%d, 4, v%d' % (V_OPW, V_L))
    a('v_add_u32 v%d, s%d, v%d' % (V_OPW, S_T4, V_OPW))
    V_OST = V_T1
    a('v_lshlrev_b32 v%d, 9, v%d' % (V_OST, V_T2))
    a('v_and_b32 v%d, 7, v%d' % (V_T, V_L))
    a('v_lshl_add_u32 v%d, v%d, 4, v%d' % (V_OST, V_T, V_OST))
    a('s_lshl_b32 s%d, s%d, 7' % (S_T4, S_W))
    a('v_add_u32 v%d, s%d, v%d' % (V_OST, S_T4, V_OST))
    V_H2 = V_KOFF
    a('v_and_b32 v%d, 7, v%d' % (V_H2, V_L))
    a('v_lshlrev_b32 v%d, 16, v%d' % (V_H2, V_H2))
    a('v_bfe_u32 v%d, v%d, 3, 1' % (V_T, V_L))
    a('v_lshl_add_u32 v%d, v%d, 6, v%d' % (V_H2, V_T, V_H2))
    a('v_lshrrev_b32 v%d, 4, v%d' % (V_T, V_L))
    a('v_lshl_add_u32 v%d, v%d, 4, v%d' % (V_H2, V_T, V_H2))
    a('s_lshl_b32 s%d, s%d, 7' % (S_T4, S_W))
    a('v_add_u32 v%d, s%d, v%d' % (V_H2, S_T4, V_H2))
    for Tg in range(2):
        for p in range(4):
            kk0 = 8*Tg + 2*p
            a.wait_vm(V_Tk[kk0+1])
            for m in range(4):
                for e in range(2):
                    j = 2*m + e
                    a('v_perm_b32 v%d, v%d, v%d, s%d' % (V_BF + 4*j + p, vreg(kk0+1) + m, vreg(kk0) + m, S_PHI if e else S_PLO))
            issue_next(2)
        for j in range(8):
            cs = '0' if Tg == 0 else 'v[%d:%d]' % (V_ACC+4*j, V_ACC+4*j+3)
            a('v_mfma_f32_16x16x32_bf16 v[%d:%d], v[%d:%d], v[%d:%d], %s' % (V_ACC+4*j, V_ACC+4*j+3, PF+4*Tg, PF+4*Tg+3, V_BF+4*j, V_BF+4*j+3, cs))
    issue_next(99)
    stamp(8)
    a('s_mov_b64 exec, 0xffff')
    for j in range(8):
        a('ds_write_b128 v%d, v[%d:%d] offset:%d' % (V_OPW, V_ACC+4*j, V_ACC+4*j+3, j*OP_J))
    a('s_mov_b64 exec, -1')
    a('s_waitcnt lgkmcnt(0)')
    a('s_barrier')
    R = V_VA
    for jj in range(4):
        for wp in range(4):
            a('ds_read_b32 v%d, v%d offset:%d' % (R+4*jj+wp, V_OPR, jj*OP_J + wp*256))
    for jj in range(4):
        a('s_waitcnt lgkmcnt(%d)' % (12 - 4*jj))
        a('v_add_f32 v%d, v%d, v%d' % (R+4*jj, R+4*jj, R+4*jj+1))
        a('v_add_f32 v%d, v%d, v%d' % (R+4*jj+2, R+4*jj+2, R+4*jj+3))
        a('v_add_f32 v%d, v%d, v%d' % (R+4*jj, R+4*jj, R+4*jj+2))
        a('v_mul_f32 v%d, v%d, v%d' % (R+4*jj, R+4*jj, V_RL))
    a('v_cvt_pk_bf16_f32 v%d, v%d, v%d' % (V_OG, R, R+4))
    a('v_cvt_pk_bf16_f32 v%d, v%d, v%d' % (V_OG+1, R+8, R+12))
    a('s_mov_b64 exec, 0xffffffff')
    a.vm('buffer_store_dwordx4 v[%d:%d], v%d, s[%d:%d], s%d offen sc1' % (V_OG, V_OG+3, V_OST, SRD_WS, SRD_WS+3, S_PUBO))
    a('s_mov_b64 exec, -1')
    stamp(9)

    BF2 = V_BF
    for j in range(8):
        a('v_mov_b32 v%d, 0' % (BF2 + 2*j + 1))
    a.wait_vm(WD_T[1])
    for m in range(4):
        for e in range(2):
            j = 2*m + e
            a('v_perm_b32 v%d, v%d, v%d, s%d' % (BF2 + 2*j, V_WD + 4 + m, V_WD + m, S_PHI if e else S_PLO))
    for j in range(8):
        a('v_mfma_f32_16x16x16_bf16 v[%d:%d], v[%d:%d], v[%d:%d], 0' % (V_ACC+4*j, V_ACC+4*j+3, V_HA, V_HA+1, BF2+2*j, BF2+2*j+1))
    red_publish(S_PUBG, V_VB)
    a('v_add_u32 v%d, 16384, v%d' % (V_REDW, V_REDW))
    a('v_add_u32 v%d, 16384, v%d' % (V_REDR, V_REDR))
    G2 = V_VA
    a('s_add_u32 s%d, s%d, 16384' % (S_T4, S_H2))
    a('s_add_u32 s%d, s%d, 32768' % (S_T5, S_H2))
    a('s_add_u32 s%d, s%d, 49152' % (S_T6, S_H2))
    gs = [S_H2, S_T4, S_T5, S_T6]
    tg = None
    for s in range(4):
        tg = a.vm('buffer_load_dwordx4 v[%d:%d], v%d, s[%d:%d], s%d offen sc1' % (G2+4*s, G2+4*s+3, V_H2, SRD_WS, SRD_WS+3, gs[s]))
    a.wait_vm(WO_T[3])
    for p in range(2):
        for m in range(4):
            for e in range(2):
                j = 2*m + e
                a('v_perm_b32 v%d, v%d, v%d, s%d' % (V_BF + 2*j + p, V_WO + 4*(2*p+1) + m, V_WO + 4*(2*p) + m, S_PHI if e else S_PLO))
    a.wait_vm(tg)
    a('s_mov_b32 s%d, 200000' % S_CNT)
    a('L_g2:')
    a('v_cmp_eq_u32 vcc, s%d, v%d' % (S_TAG, G2+3))
    for s in range(1, 4):
        a('v_cmp_eq_u32 s[%d:%d], s%d, v%d' % (S_T0, S_T0+1, S_TAG, G2+4*s+3))
        a('s_and_b64 vcc, vcc, s[%d:%d]' % (S_T0, S_T0+1))
    a('s_cmp_eq_u64 vcc, -1')
    a('s_cbranch_scc1 L_g2_ok')
    a('s_sub_u32 s%d, s%d, 1' % (S_CNT, S_CNT))
    a('s_cbranch_scc1 L_g2_ok')
    for s in range(4):
        a('buffer_load_dwordx4 v[%d:%d], v%d, s[%d:%d], s%d offen sc1' % (G2+4*s, G2+4*s+3, V_H2, SRD_WS, SRD_WS+3, gs[s]))
    a('s_waitcnt vmcnt(0)')
    a('s_branch L_g2')
    a('L_g2_ok:')
    stamp(10)
    E = V_VA + 16
    a('v_max3_f32 v%d, v%d, v%d, v%d' % (E+4, G2+2, G2+6, G2+10))
    a('v_max_f32 v%d, v%d, v%d' % (E+4, E+4, G2+14))
    for s in range(4): a('v_sub_f32 v%d, v%d, v%d' % (E+s, G2+4*s+2, E+4))
    for s in range(4): a('v_exp_f32 v%d, v%d' % (E+s, E+s))
    a('v_add_f32 v%d, v%d, v%d' % (E+4, E, E+1))
    a('v_add_f32 v%d, v%d, v%d' % (E+5, E+2, E+3))
    a('v_add_f32 v%d, v%d, v%d' % (E+4, E+4, E+5))
    a('v_rcp_f32 v%d, v%d' % (E+4, E+4))
    O4 = E + 8
    U = E + 12
    for s in range(4):
        a('v_lshlrev_b32 v%d, 16, v%d' % (U, G2+4*s))
        a('v_and_b32 v%d, s%d, v%d' % (U+1, S_MASK, G2+4*s))
        a('v_lshlrev_b32 v%d, 16, v%d' % (U+2, G2+4*s+1))
        a('v_and_b32 v%d, s%d, v%d' % (U+3, S_MASK, G2+4*s+1))
        for d in range(4):
            if s == 0: a('v_mul_f32 v%d, v%d, v%d' % (O4+d, U+d, E))
            else: a('v_fmac_f32 v%d, v%d, v%d' % (O4+d, U+d, E+s))
    for d in range(4): a('v_mul_f32 v%d, v%d, v%d' % (O4+d, O4+d, E+4))
    AO = V_HA
    a('v_cvt_pk_bf16_f32 v%d, v%d, v%d' % (AO, O4, O4+1))
    a('v_cvt_pk_bf16_f32 v%d, v%d, v%d' % (AO+1, O4+2, O4+3))
    for j in range(8):
        a('v_mfma_f32_16x16x16_bf16 v[%d:%d], v[%d:%d], v[%d:%d], 0' % (V_ACC+4*j, V_ACC+4*j+3, AO, AO+1, V_BF+2*j, V_BF+2*j+1))
    red_publish(S_PUBS, V_VB)
    a('s_cmp_lg_u32 s%d, 0' % S_W)
    a('s_cbranch_scc1 L_fin')
    a('v_lshrrev_b32 v%d, 3, v%d' % (V_T, V_L))
    a('v_lshlrev_b32 v%d, 12, v%d' % (V_T, V_T))
    a('v_and_b32 v%d, 7, v%d' % (V_T2, V_L))
    a('v_lshl_add_u32 v%d, v%d, 4, v%d' % (V_T, V_T2, V_T))
    a('s_and_b32 s%d, s%d, 7' % (S_T4, S_R))
    a('s_lshl_b32 s%d, s%d, 17' % (S_T4, S_T4))
    a('s_lshl_b32 s%d, s%d, 9' % (S_T5, S_H))
    a('s_add_u32 s%d, s%d, s%d' % (S_T4, S_T4, S_T5))
    a('s_lshr_b32 s%d, s%d, 3' % (S_T5, S_R))
    a('s_lshl_b32 s%d, s%d, 7' % (S_T5, S_T5))
    a('s_add_u32 s%d, s%d, s%d' % (S_T4, S_T4, S_T5))
    GS = V_BF
    GG = V_BF + 16
    so = [S_K, S_V, S_A, S_WO]; go = [S_WD, S_QG, S_HG, S_H2]
    for i in range(4):
        a('s_add_u32 s%d, s%d, 0x%x' % (so[i], S_T4, WS_S + i*8*4096))
        a('s_add_u32 s%d, s%d, 0x%x' % (go[i], S_T4, WS_G + i*8*4096))
    a('v_mov_b32 v%d, 0' % (GG+12))
    a('v_mov_b32 v%d, 0' % (GG+13))
    a('v_mov_b32 v%d, s%d' % (GG+14, S_TAG))
    a('v_mov_b32 v%d, s%d' % (GG+15, S_TAG+1))
    def g_issue():
        for i in range(3):
            a('buffer_load_dwordx4 v[%d:%d], v%d, s[%d:%d], s%d offen sc1' % (GG+4*i, GG+4*i+3, V_T, SRD_WS, SRD_WS+3, go[i]))
        a('s_mov_b64 exec, 0xffffffff')
        a('buffer_load_dwordx4 v[%d:%d], v%d, s[%d:%d], s%d offen sc1' % (GG+12, GG+15, V_T, SRD_WS, SRD_WS+3, go[3]))
        a('s_mov_b64 exec, -1')
    def s_issue():
        for i in range(4):
            a('buffer_load_dwordx4 v[%d:%d], v%d, s[%d:%d], s%d offen sc1' % (GS+4*i, GS+4*i+3, V_T, SRD_WS, SRD_WS+3, so[i]))
    def chk(base, lab_ok):
        a('v_cmp_eq_u64 vcc, s[%d:%d], v[%d:%d]' % (S_TAG, S_TAG+1, base+2, base+3))
        for i in range(1, 4):
            a('v_cmp_eq_u64 s[%d:%d], s[%d:%d], v[%d:%d]' % (S_T0, S_T0+1, S_TAG, S_TAG+1, base+4*i+2, base+4*i+3))
            a('s_and_b64 vcc, vcc, s[%d:%d]' % (S_T0, S_T0+1))
        a('s_cmp_eq_u64 vcc, -1')
        a('s_cbranch_scc1 %s' % lab_ok)
    a('s_mov_b32 s%d, 200000' % S_CNT)
    a('L_f1:')
    g_issue()
    a('s_waitcnt vmcnt(0)')
    chk(GG, 'L_f1_ok')
    a('s_sub_u32 s%d, s%d, 1' % (S_CNT, S_CNT))
    a('s_cbranch_scc0 L_f1')
    a('L_f1_ok:')
    a('s_mov_b32 s%d, 200000' % S_CNT)
    a('L_f2:')
    s_issue()
    a('s_waitcnt vmcnt(0)')
    chk(GS, 'L_f2_ok')
    a('s_sub_u32 s%d, s%d, 1' % (S_CNT, S_CNT))
    a('s_cbranch_scc0 L_f2')
    a('L_f2_ok:')
    for base in (GS, GG):
        for e in range(2):
            a('v_add_f32 v%d, v%d, v%d' % (base+e, base+e, base+4+e))
            a('v_add_f32 v%d, v%d, v%d' % (base+8+e, base+8+e, base+12+e))
        for e in range(2):
            a('v_add_f32 v%d, v%d, v%d' % (base+e, base+e, base+8+e))
    vals = [GS, GS+1, GG, GG+1]
    tmps = [GS+4, GS+5, GS+6, GS+7]
    for r in vals:
        a('v_add_f32_dpp v%d, v%d, v%d row_ror:8 row_mask:0xf bank_mask:0xf' % (r, r, r))
    for r, t in zip(vals, tmps): a('v_mov_b32 v%d, v%d' % (t, r))
    for r, t in zip(vals, tmps): a('v_permlane16_swap_b32 v%d, v%d' % (r, t))
    for r, t in zip(vals, tmps): a('v_add_f32 v%d, v%d, v%d' % (r, r, t))
    for r, t in zip(vals, tmps): a('v_mov_b32 v%d, v%d' % (t, r))
    for r, t in zip(vals, tmps): a('v_permlane32_swap_b32 v%d, v%d' % (r, t))
    for r, t in zip(vals, tmps): a('v_add_f32 v%d, v%d, v%d' % (r, r, t))
    rnd_pair(GS, GS+1, GS+4)
    rnd_pair(GG, GG+1, GS+5)
    a('s_mov_b32 s%d, 0x%08x' % (S_T5, f2u(-1.4426950408889634)))
    for e in range(2):
        a('v_mul_f32 v%d, s%d, v%d' % (GS+8+e, S_T5, GG+e))
        a('v_exp_f32 v%d, v%d' % (GS+8+e, GS+8+e))
        a('v_add_f32 v%d, 1.0, v%d' % (GS+8+e, GS+8+e))
        a('v_rcp_f32 v%d, v%d' % (GS+8+e, GS+8+e))
        a('v_mul_f32 v%d, v%d, v%d' % (GG+e, GG+e, GS+8+e))
    rnd_pair(GG, GG+1, GS+5)
    for e in range(2):
        a('v_mul_f32 v%d, v%d, v%d' % (GS+e, GS+e, GG+e))
    rnd_pair(GS, GS+1, GS+4)
    a('v_lshlrev_b32 v%d, 16, v%d' % (GS+8, V_XF))
    a('v_and_b32 v%d, s%d, v%d' % (GS+9, S_MASK, V_XF))
    for e in range(2):
        a('v_add_f32 v%d, v%d, v%d' % (GS+e, GS+e, GS+8+e))
    a('v_cvt_pk_bf16_f32 v%d, v%d, v%d' % (GS, GS, GS+1))
    a('s_mov_b64 exec, 0xff')
    a('buffer_store_dword v%d, v%d, s[%d:%d], 0 offen' % (GS, V_OUTOFF, SRD_OUT, SRD_OUT+3))
    a('s_mov_b64 exec, -1')
    a('L_fin:')
    if stamps:
        a('s_memrealtime s[%d:%d]' % (S_NONCE, S_NONCE+1))
        a('s_waitcnt lgkmcnt(0)')
        NS = 12
        a('s_lshl_b32 s%d, s2, 2' % S_T4)
        a('s_add_u32 s%d, s%d, s%d' % (S_T4, S_T4, S_W))
        a('s_mul_i32 s%d, s%d, %d' % (S_T4, S_T4, NS*8))
        a('s_add_u32 s%d, s%d, 0x%x' % (S_T4, S_T4, WS_STAMP))
        a('v_mov_b32 v%d, 0' % V_T2)
        a('s_mov_b64 exec, 1')
        for i in range(NS):
            sr = S_STAMP + 2*i if i < 11 else S_NONCE
            a('v_mov_b32 v%d, s%d' % (V_BF, sr))
            a('v_mov_b32 v%d, s%d' % (V_BF+1, sr+1))
            a('buffer_store_dwordx2 v[%d:%d], v%d, s[%d:%d], s%d offen offset:%d' % (V_BF, V_BF+1, V_T2, SRD_WS, SRD_WS+3, S_T4, i*8))
            a('s_waitcnt vmcnt(0)')
    a('L_end:')
    a('s_endpgm')
    body = a.finalize()
    txt = wrap(body, 256, 256, LDS_BYTES, NV + 64, 102, NV, stamps=(1024, 12) if stamps else None)
    open(fname, 'w').write(txt)
    return a

if __name__ == '__main__':
    a = gen(stamps=False, fname='main.s')
    print('nops inserted', a.nops, 'instrs', len(a.ins))
    gen(stamps=True, fname='main_st.s')
```

```python
import sys, struct
from asmlib import *

def f2u(x): return struct.unpack('<I', struct.pack('<f', x))[0]

WS_A = 0x000000
WS_G = 0x100000
WS_S = 0x200000
WS_O = 0x300000
WS_STAMP = 0x8000000
L_XN = 0; XN_STRIDE = 1056
L_Q = 8704
L_MAX = 9728
L_LS = 9792
L_OP = 10240; OP_J = 1040
L_RED1 = 18688
L_RED2 = L_RED1 + 16384
LDS_BYTES = L_RED2 + 16384

S_W = 3
SRD_X, SRD_K, SRD_V, SRD_A, SRD_WO, SRD_WD, SRD_OUT, SRD_DBG, SRD_WS = 4, 8, 12, 16, 20, 24, 28, 32, 36
S_WQ = 40; S_WG = 44; S_WU = 46
S_H = 42; S_R = 43
S_K = 48; S_V = 49; S_A = 50; S_ASTR = 51; S_WO = 52; S_WD = 53
S_TAG = 54
S_PLO = 56; S_PHI = 57
S_PUB = 58; S_CNT = 59
S_T0 = 60
S_RET = 62
S_T2 = 64
S_T4 = 66; S_T5 = 67; S_T6 = 68; S_T7 = 69
S_QG = 70
S_HG = 71
S_H2 = 72
S_C = 73
S_NONCE = 74
S_MASK = 76
S_PUBG = 77; S_PUBS = 78; S_PUBO = 79
S_STAMP = 80

V_L = 0
V_KOFF = 1
V_VOFF = 2
V_T = 3
V_T1 = 4
V_T2 = 5
V_T3 = 6
V_XF = 7
V_GR = 8
V_OG = 12
V_VA = 16
V_VB = 48
V_BF = 80
V_ACC = 112
V_WO = 144
V_WD = 160
V_QF = 168
V_S = 176
V_HA = 180
V_AOFF = 182
V_PUB = 183
V_REDW = 184
V_REDR = 185
V_OUTOFF = 186
V_WOOFF = 187
V_WDOFF = 188
V_RL = 189
V_NONCE = 190
V_AF = 140
NV = 192

def gen(stamps=False, win=8, fname='out.s', exp=None):
    a = Prog()
    nst = [0]
    def stamp(i):
        if stamps:
            a('s_memrealtime s[%d:%d]' % (S_STAMP + 2*i, S_STAMP + 2*i + 1))
    K_T = []; V_Tk = []
    def issue_K(kk):
        t = a.vm('buffer_load_dwordx4 a[%d:%d], v%d, s[%d:%d], s%d offen nt' % (4*kk, 4*kk+3, V_KOFF, SRD_K, SRD_K+3, S_K))
        a('s_add_u32 s%d, s%d, 4096' % (S_K, S_K))
        K_T.append(t)
    def vreg(kk):
        return (V_VA + 4*kk) if kk < 8 else (V_VB + 4*(kk-8))
    def issue_V(kk):
        r = vreg(kk)
        t = a.vm('buffer_load_dwordx4 v[%d:%d], v%d, s[%d:%d], s%d offen nt' % (r, r+3, V_VOFF, SRD_V, SRD_V+3, S_V))
        a('s_add_u32 s%d, s%d, 4096' % (S_V, S_V))
        V_Tk.append(t)

    a('s_memrealtime s[%d:%d]' % (S_NONCE, S_NONCE+1))
    stamp(0)
    a('s_cmp_ge_u32 s2, 256')
    a('s_cbranch_scc1 L_end')
    a('s_load_dwordx2 s[%d:%d], s[0:1], 0' % (SRD_X, SRD_X+1))
    a('s_load_dwordx2 s[%d:%d], s[0:1], 24' % (S_WQ, S_WQ+1))
    a('s_load_dwordx4 s[%d:%d], s[0:1], 48' % (S_WG, S_WG+3))
    a('s_load_dwordx2 s[%d:%d], s[0:1], 8' % (SRD_K, SRD_K+1))
    a('s_load_dwordx2 s[%d:%d], s[0:1], 80' % (SRD_DBG, SRD_DBG+1))
    a('s_load_dwordx2 s[%d:%d], s[0:1], 16' % (SRD_V, SRD_V+1))
    a('s_load_dwordx2 s[%d:%d], s[0:1], 88' % (SRD_WS, SRD_WS+1))
    a('s_load_dwordx2 s[%d:%d], s[0:1], 32' % (SRD_WO, SRD_WO+1))
    a('s_load_dwordx2 s[%d:%d], s[0:1], 64' % (SRD_WD, SRD_WD+1))
    a('s_load_dwordx2 s[%d:%d], s[0:1], 72' % (SRD_OUT, SRD_OUT+1))
    a('v_lshrrev_b32 v%d, 6, v0' % V_T)
    a('v_readfirstlane_b32 s%d, v%d' % (S_W, V_T))
    a('v_lshrrev_b32 v%d, 5, v0' % V_T1)
    a('v_lshlrev_b32 v%d, 10, v%d' % (V_T1, V_T1))
    a('v_and_b32 v%d, 31, v0' % V_T2)
    a('v_lshl_add_u32 v%d, v%d, 4, v%d' % (V_T1, V_T2, V_T1))
    a('v_lshrrev_b32 v%d, 5, v0' % V_T3)
    a('v_mul_u32_u24 v%d, %d, v%d' % (V_T3, XN_STRIDE, V_T3))
    a('v_lshl_add_u32 v%d, v%d, 4, v%d' % (V_T3, V_T2, V_T3))
    a('v_and_b32 v%d, 63, v0' % V_L)
    for s, n in ((SRD_X, 8192), (SRD_K, 0x4000000), (SRD_V, 0x4000000), (SRD_WO, 0x400000), (SRD_WD, 1792*1024),
                 (SRD_OUT, 8192), (SRD_DBG, 256), (SRD_WS, 0x10000000 if stamps else 0x400000)):
        a('s_mov_b32 s%d, 0x%x' % (s+2, n))
        a('s_mov_b32 s%d, 0x00020000' % (s+3))
    a('s_mov_b32 s%d, 0x00020000' % (SRD_A+3))
    a('s_and_b32 s%d, s2, 7' % S_H)
    a('s_lshr_b32 s%d, s2, 3' % S_R)
    a('s_movk_i32 s%d, 3584' % S_ASTR)
    a('s_mov_b32 s%d, 0x1c0000' % (SRD_A+2))
    a('s_movk_i32 s%d, 128' % S_T4)
    a('s_cmp_lt_u32 s2, 128')
    a('s_cselect_b32 s%d, 8192, s%d' % (S_ASTR, S_ASTR))
    a('s_cselect_b32 s%d, 0x400000, s%d' % (SRD_A+2, SRD_A+2))
    a('s_cselect_b32 s%d, 0, s%d' % (S_T4, S_T4))
    a('s_cmp_ge_u32 s2, 184')
    a('s_cselect_b32 s%d, 184, s%d' % (S_T4, S_T4))
    a('s_cmp_ge_u32 s2, 240')
    a('s_cselect_b32 s%d, 0, s%d' % (SRD_A+2, SRD_A+2))
    a('s_sub_u32 s%d, s2, s%d' % (S_T4, S_T4))
    a('s_lshr_b32 s%d, s%d, 1' % (S_T4, S_T4))
    a('s_lshl_b32 s%d, s%d, 7' % (S_T4, S_T4))
    a('s_and_b32 s%d, s2, 1' % S_T5)
    a('s_lshl_b32 s%d, s%d, 2' % (S_T5, S_T5))
    a('s_add_u32 s%d, s%d, s%d' % (S_T5, S_T5, S_W))
    a('s_lshl_b32 s%d, s%d, 6' % (S_T5, S_T5))
    a('s_mul_i32 s%d, s%d, s%d' % (S_A, S_T5, S_ASTR))
    a('s_add_u32 s%d, s%d, s%d' % (S_A, S_A, S_T4))
    a('v_and_b32 v%d, 0x38, v%d' % (V_AOFF, V_L))
    a('v_mul_u32_u24 v%d, s%d, v%d' % (V_AOFF, S_ASTR, V_AOFF))
    a('v_and_b32 v%d, 7, v%d' % (V_T2, V_L))
    a('v_lshl_add_u32 v%d, v%d, 4, v%d' % (V_AOFF, V_T2, V_AOFF))
    a('v_mul_u32_u24 v%d, %d, v%d' % (V_T, XN_STRIDE, V_T2))
    a('v_and_b32 v%d, 0x38, v%d' % (V_QF, V_L))
    a('v_lshl_add_u32 v%d, v%d, 1, v%d' % (V_QF, V_QF, V_T))
    a('s_lshl_b32 s%d, s%d, 1' % (S_T5, S_T5))
    a('v_add_u32 v%d, s%d, v%d' % (V_QF, S_T5, V_QF))
    a('v_bfe_u32 v%d, v%d, 2, 2' % (V_KOFF, V_L))
    a('v_lshlrev_b32 v%d, 8, v%d' % (V_KOFF, V_KOFF))
    a('v_lshrrev_b32 v%d, 4, v%d' % (V_T, V_L))
    a('v_lshl_add_u32 v%d, v%d, 6, v%d' % (V_KOFF, V_T, V_KOFF))
    a('v_and_b32 v%d, 3, v%d' % (V_T, V_L))
    a('v_lshl_add_u32 v%d, v%d, 4, v%d' % (V_KOFF, V_T, V_KOFF))
    a('v_lshlrev_b32 v%d, 4, v%d' % (V_VOFF, V_L))
    a('s_lshr_b32 s%d, s%d, 2' % (S_T4, S_R))
    a('s_lshl_b32 s%d, s%d, 3' % (S_T4, S_T4))
    a('s_add_u32 s%d, s%d, s%d' % (S_T4, S_T4, S_H))
    a('s_lshl_b32 s%d, s%d, 20' % (S_K, S_T4))
    a('s_and_b32 s%d, s%d, 3' % (S_T4, S_R))
    a('s_lshl_b32 s%d, s%d, 16' % (S_T4, S_T4))
    a('s_add_u32 s%d, s%d, s%d' % (S_K, S_K, S_T4))
    a('s_lshl_b32 s%d, s%d, 10' % (S_T4, S_W))
    a('s_add_u32 s%d, s%d, s%d' % (S_K, S_K, S_T4))
    a('s_add_u32 s%d, s%d, 0x%x' % (S_K, S_K, 3072*256))
    a('s_mov_b32 s%d, s%d' % (S_V, S_K))
    a('s_waitcnt lgkmcnt(0)')
    stamp(1)
    a('s_cmp_lt_u32 s2, 128')
    a('s_cselect_b64 s[%d:%d], s[%d:%d], s[%d:%d]' % (SRD_A, SRD_A+1, S_WQ, S_WQ+1, S_WG, S_WG+1))
    a('s_cmp_ge_u32 s2, 184')
    a('s_cselect_b64 s[%d:%d], s[%d:%d], s[%d:%d]' % (SRD_A, SRD_A+1, S_WU, S_WU+1, SRD_A, SRD_A+1))
    X0 = V_VA
    tx0 = a.vm('buffer_load_dwordx4 v[%d:%d], v%d, s[%d:%d], 0 offen' % (X0, X0+3, V_T1, SRD_X, SRD_X+3))
    tx1 = a.vm('buffer_load_dwordx4 v[%d:%d], v%d, s[%d:%d], 0 offen offset:512' % (X0+4, X0+7, V_T1, SRD_X, SRD_X+3))
    W_T = []
    for kk in range(8):
        r = V_VB + 4*kk
        W_T.append(a.vm('buffer_load_dwordx4 v[%d:%d], v%d, s[%d:%d], s%d offen nt' % (r, r+3, V_AOFF, SRD_A, SRD_A+3, S_A)))
        if kk < 7: a('s_add_u32 s%d, s%d, s%d' % (S_A, S_A, S_ASTR))
    a('s_or_b32 s%d, s2, s%d' % (S_T4, S_W))
    a('s_cmp_lg_u32 s%d, 0' % S_T4)
    a('s_cbranch_scc1 L_nononce')
    a('s_or_b32 s%d, s%d, 1' % (S_T4, S_NONCE))
    a('v_mov_b32 v%d, s%d' % (V_T, S_T4))
    a('v_mov_b32 v%d, 0' % V_T2)
    a('s_mov_b64 exec, 1')
    a('buffer_store_dword v%d, v%d, s[%d:%d], 0 offen sc0 sc1' % (V_T, V_T2, SRD_DBG, SRD_DBG+3))
    a('s_mov_b64 exec, -1')
    a('L_nononce:')
    a('v_mov_b32 v%d, 0' % V_T2)
    tnonce = a.vm('buffer_load_dword v%d, v%d, s[%d:%d], 0 offen sc1' % (V_NONCE, V_T2, SRD_DBG, SRD_DBG+3))
    a('s_lshl_b32 s%d, s%d, 10' % (S_T4, S_H))
    a('s_and_b32 s%d, s%d, 7' % (S_T5, S_R))
    a('s_lshl_b32 s%d, s%d, 7' % (S_T5, S_T5))
    a('s_add_u32 s%d, s%d, s%d' % (S_T4, S_T4, S_T5))
    a('s_lshr_b32 s%d, s%d, 3' % (S_T5, S_R))
    a('s_lshl_b32 s%d, s%d, 2' % (S_T5, S_T5))
    a('s_add_u32 s%d, s%d, s%d' % (S_T4, S_T4, S_T5))
    a('v_and_b32 v%d, 7, v%d' % (V_OUTOFF, V_L))
    a('v_lshlrev_b32 v%d, 4, v%d' % (V_OUTOFF, V_OUTOFF))
    a('v_add_u32 v%d, s%d, v%d' % (V_OUTOFF, S_T4, V_OUTOFF))
    txf = a.vm('buffer_load_dword v%d, v%d, s[%d:%d], 0 offen' % (V_XF, V_OUTOFF, SRD_X, SRD_X+3))
    NK0 = 4
    for kk in range(NK0): issue_K(kk)

    a('s_mov_b32 s%d, 0x05040100' % S_PLO)
    a('s_mov_b32 s%d, 0x07060302' % S_PHI)
    a('s_mov_b32 s%d, 0xffff0000' % S_MASK)
    a('s_mov_b32 s%d, 0x%08x' % (S_C, f2u(128**-0.5 * 1.4426950408889634)))
    a('v_bfe_u32 v%d, v%d, 4, 1' % (V_REDW, V_L))
    a('v_lshlrev_b32 v%d, 13, v%d' % (V_REDW, V_REDW))
    a('v_and_b32 v%d, 15, v%d' % (V_T, V_L))
    a('v_lshl_add_u32 v%d, v%d, 4, v%d' % (V_REDW, V_T, V_REDW))
    a('s_lshl_b32 s%d, s%d, 8' % (S_T4, S_W))
    a('s_add_u32 s%d, s%d, %d' % (S_T4, S_T4, L_RED1))
    a('v_add_u32 v%d, s%d, v%d' % (V_REDW, S_T4, V_REDW))
    a('v_lshrrev_b32 v%d, 5, v%d' % (V_REDR, V_L))
    a('v_lshlrev_b32 v%d, 13, v%d' % (V_REDR, V_REDR))
    a('v_and_b32 v%d, 7, v%d' % (V_T, V_L))
    a('v_lshl_add_u32 v%d, v%d, 4, v%d' % (V_REDR, V_T, V_REDR))
    a('v_bfe_u32 v%d, v%d, 3, 2' % (V_T2, V_L))
    a('v_lshl_add_u32 v%d, v%d, 2, v%d' % (V_REDR, V_T2, V_REDR))
    a('s_lshl_b32 s%d, s%d, 11' % (S_T4, S_W))
    a('s_add_u32 s%d, s%d, %d' % (S_T4, S_T4, L_RED1))
    a('v_add_u32 v%d, s%d, v%d' % (V_REDR, S_T4, V_REDR))
    a('v_lshrrev_b32 v%d, 3, v%d' % (V_PUB, V_L))
    a('v_lshlrev_b32 v%d, 9, v%d' % (V_PUB, V_PUB))
    a('v_lshl_add_u32 v%d, v%d, 4, v%d' % (V_PUB, V_T, V_PUB))
    a('s_lshl_b32 s%d, s%d, 7' % (S_T4, S_W))
    a('v_add_u32 v%d, s%d, v%d' % (V_PUB, S_T4, V_PUB))
    a('s_lshl_b32 s%d, s2, 12' % S_PUB)
    a('s_and_b32 s%d, s%d, 7' % (S_T4, S_R))
    a('s_lshr_b32 s%d, s%d, 3' % (S_T5, S_R))
    a('s_lshl_b32 s%d, s%d, 2' % (S_T6, S_H))
    a('s_add_u32 s%d, s%d, s%d' % (S_T6, S_T6, S_T5))
    a('s_lshl_b32 s%d, s%d, 5' % (S_PUBS, S_T4))
    a('s_add_u32 s%d, s%d, s%d' % (S_PUBS, S_PUBS, S_T6))
    a('s_lshl_b32 s%d, s%d, 12' % (S_PUBS, S_PUBS))
    a('s_add_u32 s%d, s%d, 0x%x' % (S_PUBS, S_PUBS, WS_S))
    a('s_lshl_b32 s%d, s%d, 2' % (S_WO, S_T6))
    a('s_add_u32 s%d, s%d, s%d' % (S_WO, S_WO, S_W))
    a('s_lshl_b32 s%d, s%d, 15' % (S_WO, S_WO))
    a('s_lshl_b32 s%d, s%d, 7' % (S_T7, S_T4))
    a('s_add_u32 s%d, s%d, s%d' % (S_WO, S_WO, S_T7))
    a('s_lshl_b32 s%d, s%d, 3' % (S_T6, S_T5))
    a('s_add_u32 s%d, s%d, s%d' % (S_T6, S_T6, S_H))
    a('s_lshl_b32 s%d, s%d, 2' % (S_WD, S_T6))
    a('s_add_u32 s%d, s%d, s%d' % (S_WD, S_WD, S_W))
    a('s_lshl_b32 s%d, s%d, 14' % (S_WD, S_WD))
    a('s_add_u32 s%d, s%d, s%d' % (S_WD, S_WD, S_T7))
    a('s_lshl_b32 s%d, s%d, 5' % (S_PUBG, S_T4))
    a('s_add_u32 s%d, s%d, s%d' % (S_PUBG, S_PUBG, S_T6))
    a('s_lshl_b32 s%d, s%d, 12' % (S_PUBG, S_PUBG))
    a('s_add_u32 s%d, s%d, 0x%x' % (S_PUBG, S_PUBG, WS_G))
    a('s_min_u32 s%d, s%d, 27' % (S_T6, S_T6))
    a('s_lshl_b32 s%d, s%d, 13' % (S_HG, S_T6))
    a('s_add_u32 s%d, s%d, 0x%x' % (S_HG, S_HG, WS_A + 128*4096))
    a('s_lshl_b32 s%d, s%d, 16' % (S_QG, S_H))
    a('s_lshr_b32 s%d, s%d, 2' % (S_T6, S_R))
    a('s_lshl_b32 s%d, s%d, 9' % (S_T6, S_T6))
    a('s_add_u32 s%d, s%d, s%d' % (S_QG, S_QG, S_T6))
    a('s_lshl_b32 s%d, s%d, 11' % (S_H2, S_H))
    a('s_lshl_b32 s%d, s%d, 9' % (S_T6, S_T5))
    a('s_add_u32 s%d, s%d, s%d' % (S_H2, S_H2, S_T6))
    a('s_add_u32 s%d, s%d, 0x%x' % (S_H2, S_H2, WS_O))
    a('s_lshl_b32 s%d, s2, 11' % S_PUBO)
    a('s_add_u32 s%d, s%d, 0x%x' % (S_PUBO, S_PUBO, WS_O))
    a('v_bfe_u32 v%d, v%d, 3, 1' % (V_T2, V_L))
    a('v_lshrrev_b32 v%d, 4, v%d' % (V_T1, V_L))
    a('v_lshlrev_b32 v%d, 2, v%d' % (V_WOOFF, V_T2))
    a('v_add_u32 v%d, v%d, v%d' % (V_WOOFF, V_WOOFF, V_T1))
    a('v_lshlrev_b32 v%d, 11, v%d' % (V_WDOFF, V_WOOFF))
    a('v_lshlrev_b32 v%d, 12, v%d' % (V_WOOFF, V_WOOFF))
    a('v_lshl_add_u32 v%d, v%d, 4, v%d' % (V_WDOFF, V_T, V_WDOFF))
    a('v_lshl_add_u32 v%d, v%d, 4, v%d' % (V_WOOFF, V_T, V_WOOFF))

    F = V_VA + 8
    a.wait_vm(tx1)
    stamp(2)
    for k in range(8):
        a('v_lshlrev_b32 v%d, 16, v%d' % (F+2*k, X0+k))
        a('v_and_b32 v%d, s%d, v%d' % (F+2*k+1, S_MASK, X0+k))
    T = V_VA + 24
    def tree_sum(regs, dst, op='v_add_f32'):
        regs = list(regs)
        tmp = []
        for i in range(0, len(regs), 2):
            a('%s v%d, v%d, v%d' % (op, T + i//2, regs[i], regs[i+1])); tmp.append(T + i//2)
        while len(tmp) > 1:
            nt = []
            for i in range(0, len(tmp), 2):
                a('%s v%d, v%d, v%d' % (op, tmp[i], tmp[i], tmp[i+1])); nt.append(tmp[i])
            tmp = nt
        if tmp[0] != dst: a('v_mov_b32 v%d, v%d' % (dst, tmp[0]))
    def half_reduce(r, tmp, op='v_add_f32'):
        for n in (8, 4, 2, 1):
            a('%s_dpp v%d, v%d, v%d row_ror:%d row_mask:0xf bank_mask:0xf' % (op, r, r, r, n))
        a('v_mov_b32 v%d, v%d' % (tmp, r))
        a('v_permlane16_swap_b32 v%d, v%d' % (r, tmp))
        a('%s v%d, v%d, v%d' % (op, r, r, tmp))
    MEAN = X0; VAR = X0+1; TMP = X0+2; MB = X0+3; RS = X0+4
    tree_sum(range(F, F+16), T)
    half_reduce(T, TMP)
    a('v_mul_f32 v%d, 0x%08x, v%d' % (MEAN, f2u(1.0/512), T))
    for k in range(16):
        a('v_sub_f32 v%d, v%d, v%d' % (V_BF+k, F+k, MEAN))
    a('v_mul_f32 v%d, v%d, v%d' % (T, V_BF, V_BF))
    a('v_mul_f32 v%d, v%d, v%d' % (T+1, V_BF+1, V_BF+1))
    for k in range(2, 16):
        a('v_fmac_f32 v%d, v%d, v%d' % (T + (k & 1), V_BF+k, V_BF+k))
    a('v_add_f32 v%d, v%d, v%d' % (T, T, T+1))
    half_reduce(T, TMP)
    a('v_mul_f32 v%d, 0x%08x, v%d' % (VAR, f2u(1.0/512), T))
    def rnd_bf(r):
        a('v_cvt_pk_bf16_f32 v%d, v%d, v%d' % (r, r, r))
        a('v_lshlrev_b32 v%d, 16, v%d' % (r, r))
    a('v_mov_b32 v%d, v%d' % (MB, MEAN)); rnd_bf(MB)
    rnd_bf(VAR)
    a('v_add_f32 v%d, 0x%08x, v%d' % (VAR, f2u(1e-5), VAR)); rnd_bf(VAR)
    a('v_sqrt_f32 v%d, v%d' % (VAR, VAR)); rnd_bf(VAR)
    a('v_rcp_f32 v%d, v%d' % (RS, VAR))
    XN = V_BF + 16
    for k in range(8):
        a('v_sub_f32 v%d, v%d, v%d' % (F+2*k, F+2*k, MB))
        a('v_sub_f32 v%d, v%d, v%d' % (F+2*k+1, F+2*k+1, MB))
    for k in range(8):
        a('v_cvt_pk_bf16_f32 v%d, v%d, v%d' % (T+k, F+2*k, F+2*k+1))
    for k in range(8):
        a('v_lshlrev_b32 v%d, 16, v%d' % (F+2*k, T+k))
        a('v_and_b32 v%d, s%d, v%d' % (F+2*k+1, S_MASK, T+k))
    for k in range(16):
        a('v_mul_f32 v%d, v%d, v%d' % (F+k, F+k, RS))
    for k in range(8):
        a('v_cvt_pk_bf16_f32 v%d, v%d, v%d' % (XN+k, F+2*k, F+2*k+1))
    a('ds_write_b128 v%d, v[%d:%d]' % (V_T3, XN, XN+3))
    a('ds_write_b128 v%d, v[%d:%d] offset:512' % (V_T3, XN+4, XN+7))
    a('s_waitcnt lgkmcnt(0)')
    a('s_barrier')
    AF = V_S
    a('ds_read_b128 v[%d:%d], v%d' % (AF, AF+3, V_QF))
    stamp(3)

    nk = NK0
    for p in range(4):
        a.wait_vm(W_T[2*p+1])
        for m in range(4):
            for e in range(2):
                j = 2*m + e
                a('v_perm_b32 v%d, v%d, v%d, s%d' % (V_BF + 4*j + p, V_VB + 4*(2*p+1) + m, V_VB + 4*(2*p) + m, S_PHI if e else S_PLO))
        if nk < 16: issue_K(nk); nk += 1
    a('s_waitcnt lgkmcnt(0)')
    for j in range(8):
        a('v_mfma_f32_16x16x32_bf16 v[%d:%d], v[%d:%d], v[%d:%d], 0' % (V_ACC+4*j, V_ACC+4*j+3, AF, AF+3, V_BF+4*j, V_BF+4*j+3))
    while nk < NK0 + win: issue_K(nk); nk += 1
    a.wait_vm(tnonce)
    a('s_mov_b32 s%d, 20000' % S_CNT)
    a('L_nonce:')
    a('v_readfirstlane_b32 s%d, v%d' % (S_TAG, V_NONCE))
    a('s_cmp_lg_u32 s%d, 0' % S_TAG)
    a('s_cbranch_scc1 L_nonce_ok')
    a('s_sub_u32 s%d, s%d, 1' % (S_CNT, S_CNT))
    a('s_cbranch_scc1 L_nonce_ok')
    a('v_mov_b32 v%d, 0' % V_T2)
    a('buffer_load_dword v%d, v%d, s[%d:%d], 0 offen sc1' % (V_NONCE, V_T2, SRD_DBG, SRD_DBG+3))
    a('s_waitcnt vmcnt(0)')
    a('s_branch L_nonce')
    a('L_nonce_ok:')
    a('s_xor_b32 s%d, s%d, 0x5bd1e995' % (S_TAG+1, S_TAG))
    a('v_mov_b32 v%d, s%d' % (V_GR+2, S_TAG))
    a('v_mov_b32 v%d, s%d' % (V_GR+3, S_TAG+1))
    a('v_mov_b32 v%d, s%d' % (V_OG+3, S_TAG))

    def red_publish(pub_sreg, tmpbase):
        a('s_mov_b32 exec_lo, 0x00ff00ff')
        a('s_mov_b32 exec_hi, 0xff00ff00')
        for j in range(8):
            a('ds_write_b128 v%d, v[%d:%d] offset:%d' % (V_REDW, V_ACC+4*j, V_ACC+4*j+3, j*1024))
        a('s_mov_b64 exec, -1')
        a('s_waitcnt lgkmcnt(0)')
        a('s_barrier')
        R = tmpbase
        a('v_add_u32 v%d, 1024, v%d' % (V_T, V_REDR))
        for p in range(4):
            a('ds_read2_b32 v[%d:%d], v%d offset0:%d offset1:%d' % (R+2*p, R+2*p+1, V_REDR, 64*p, 64*p+32))
        for p in range(4):
            a('ds_read2_b32 v[%d:%d], v%d offset0:%d offset1:%d' % (R+8+2*p, R+8+2*p+1, V_T, 64*p, 64*p+32))
        a('s_waitcnt lgkmcnt(4)')
        for k in range(4): a('v_add_f32 v%d, v%d, v%d' % (R+2*k, R+2*k, R+2*k+1))
        a('v_add_f32 v%d, v%d, v%d' % (R, R, R+2))
        a('v_add_f32 v%d, v%d, v%d' % (R+4, R+4, R+6))
        a('v_add_f32 v%d, v%d, v%d' % (V_GR, R, R+4))
        a('s_waitcnt lgkmcnt(0)')
        R2 = R + 8
        for k in range(4): a('v_add_f32 v%d, v%d, v%d' % (R2+2*k, R2+2*k, R2+2*k+1))
        a('v_add_f32 v%d, v%d, v%d' % (R2, R2, R2+2))
        a('v_add_f32 v%d, v%d, v%d' % (R2+4, R2+4, R2+6))
        a('v_add_f32 v%d, v%d, v%d' % (V_GR+1, R2, R2+4))
        return a.vm('buffer_store_dwordx4 v[%d:%d], v%d, s[%d:%d], s%d offen sc1' % (V_GR, V_GR+3, V_PUB, SRD_WS, SRD_WS+3, pub_sreg))
    red_publish(S_PUB, V_BF)
    stamp(4)

    while nk < 16:
        a.wait_vm(K_T[nk - win])
        issue_K(nk); nk += 1
    QG0 = V_BF; QG1 = V_BF + 4
    a('v_lshrrev_b32 v%d, 5, v%d' % (V_T, V_L))
    a('s_lshl_b32 s%d, s%d, 1' % (S_T4, S_W))
    a('v_add_u32 v%d, s%d, v%d' % (V_T, S_T4, V_T))
    a('v_and_b32 v%d, 31, v%d' % (V_T1, V_L))
    a('v_lshlrev_b32 v%d, 13, v%d' % (V_T2, V_T))
    a('v_lshl_add_u32 v%d, v%d, 4, v%d' % (V_AOFF, V_T1, V_T2))
    a('v_lshlrev_b32 v%d, 7, v%d' % (V_T, V_T))
    a('v_and_b32 v%d, 7, v%d' % (V_T2, V_L))
    a('v_lshl_add_u32 v%d, v%d, 4, v%d' % (V_T, V_T2, V_T))
    a('v_bfe_u32 v%d, v%d, 3, 2' % (V_T2, V_L))
    a('v_lshl_add_u32 v%d, v%d, 2, v%d' % (V_T3, V_T2, V_T))
    a('v_add_u32 v%d, %d, v%d' % (V_T3, L_Q, V_T3))
    a('s_add_u32 s%d, s%d, 4096' % (S_T7, S_QG))
    a.wait_vm(K_T[16 - win // 2 - 1] if win > 1 else K_T[15])
    def q_issue():
        t0 = a.vm('buffer_load_dwordx4 v[%d:%d], v%d, s[%d:%d], s%d offen sc1' % (QG0, QG0+3, V_AOFF, SRD_WS, SRD_WS+3, S_QG))
        t1 = a.vm('buffer_load_dwordx4 v[%d:%d], v%d, s[%d:%d], s%d offen sc1' % (QG1, QG1+3, V_AOFF, SRD_WS, SRD_WS+3, S_T7))
        return t1
    tq = q_issue()
    HG = V_ACC
    a('v_and_b32 v%d, 7, v%d' % (V_T, V_L))
    a('v_lshlrev_b32 v%d, 9, v%d' % (V_T, V_T))
    a('v_lshrrev_b32 v%d, 4, v%d' % (V_T1, V_L))
    a('v_lshl_add_u32 v%d, v%d, 7, v%d' % (V_T, V_T1, V_T))
    a('v_bfe_u32 v%d, v%d, 3, 1' % (V_T1, V_L))
    a('v_lshl_add_u32 v%d, v%d, 4, v%d' % (V_T, V_T1, V_T))
    a('s_lshl_b32 s%d, s%d, 5' % (S_T4, S_W))
    a('v_add_u32 v%d, s%d, v%d' % (V_T1, S_T4, V_T))
    nv = 0
    NV0 = win
    for kk in range(NV0): issue_V(kk); nv += 1
    stamp(5)
    a.wait_vm(tq)
    a('s_mov_b32 s%d, 20000' % S_CNT)
    a('L_q:')
    a('v_cmp_eq_u64 vcc, s[%d:%d], v[%d:%d]' % (S_TAG, S_TAG+1, QG0+2, QG0+3))
    a('v_cmp_eq_u64 s[%d:%d], s[%d:%d], v[%d:%d]' % (S_T0, S_T0+1, S_TAG, S_TAG+1, QG1+2, QG1+3))
    a('s_and_b64 vcc, vcc, s[%d:%d]' % (S_T0, S_T0+1))
    a('s_cmp_eq_u64 vcc, -1')
    a('s_cbranch_scc1 L_q_ok')
    a('s_sub_u32 s%d, s%d, 1' % (S_CNT, S_CNT))
    a('s_cbranch_scc1 L_q_ok')
    a('buffer_load_dwordx4 v[%d:%d], v%d, s[%d:%d], s%d offen sc1' % (QG0, QG0+3, V_AOFF, SRD_WS, SRD_WS+3, S_QG))
    a('buffer_load_dwordx4 v[%d:%d], v%d, s[%d:%d], s%d offen sc1' % (QG1, QG1+3, V_AOFF, SRD_WS, SRD_WS+3, S_T7))
    a('s_waitcnt vmcnt(0)')
    a('s_branch L_q')
    a('L_q_ok:')
    a('v_add_f32 v%d, v%d, v%d' % (QG0, QG0, QG1))
    a('v_add_f32 v%d, v%d, v%d' % (QG0+1, QG0+1, QG1+1))
    a('v_cvt_pk_bf16_f32 v%d, v%d, v%d' % (QG0, QG0, QG0+1))
    a('ds_write_b32 v%d, v%d' % (V_T3, QG0))
    a('v_and_b32 v%d, 3, v%d' % (V_T, V_L))
    a('v_lshlrev_b32 v%d, 8, v%d' % (V_T, V_T))
    a('v_lshrrev_b32 v%d, 4, v%d' % (V_T2, V_L))
    a('v_lshl_add_u32 v%d, v%d, 6, v%d' % (V_T, V_T2, V_T))
    a('v_bfe_u32 v%d, v%d, 2, 2' % (V_T2, V_L))
    a('v_lshl_add_u32 v%d, v%d, 4, v%d' % (V_T, V_T2, V_T))
    a('s_waitcnt lgkmcnt(0)')
    a('s_barrier')
    a('ds_read_b128 v[%d:%d], v%d offset:%d' % (V_QF, V_QF+3, V_T, L_Q))
    th = []
    a('s_add_u32 s40, s%d, 4096' % (S_HG))
    a('s_add_u32 s41, s%d, %d' % (S_HG, 56*4096))
    a('s_add_u32 s44, s%d, %d' % (S_HG, 57*4096))
    HG2 = V_WO
    hs = [S_HG, 40, 41, 44]
    for k in range(4):
        th.append(a.vm('buffer_load_dwordx4 v[%d:%d], v%d, s[%d:%d], s%d offen sc1' % (HG2+4*k, HG2+4*k+3, V_T1, SRD_WS, SRD_WS+3, hs[k])))
    stamp(6)
    a('s_waitcnt lgkmcnt(0)')
    D = V_BF
    for kk in range(16):
        a('v_mfma_f32_16x16x32_bf16 v[%d:%d], a[%d:%d], v[%d:%d], 0' % (D+4*kk, D+4*kk+3, 4*kk, 4*kk+3, V_QF, V_QF+3))
    for t in range(4):
        for st in range(3):
            c = (t + 1 + st) & 3
            n = 4 * ((t - c) % 4)
            for m in range(4):
                kk = 4*m + t
                s1 = (D + 4*kk + t) if st == 0 else (V_S + m)
                a('v_add_f32_dpp v%d, v%d, v%d row_ror:%d row_mask:0xf bank_mask:0x%x' % (V_S+m, D+4*kk+c, s1, n, 1 << t))
    MX = V_T
    a('v_max3_f32 v%d, v%d, v%d, v%d' % (MX, V_S, V_S+1, V_S+2))
    a('v_max_f32 v%d, v%d, v%d' % (MX, MX, V_S+3))
    def full_reduce(r, tmp, op):
        for n in (4, 8):
            a('%s_dpp v%d, v%d, v%d row_ror:%d row_mask:0xf bank_mask:0xf' % (op, r, r, r, n))
        a('v_mov_b32 v%d, v%d' % (tmp, r))
        a('v_permlane16_swap_b32 v%d, v%d' % (r, tmp))
        a('%s v%d, v%d, v%d' % (op, r, r, tmp))
        a('v_mov_b32 v%d, v%d' % (tmp, r))
        a('v_permlane32_swap_b32 v%d, v%d' % (r, tmp))
        a('%s v%d, v%d, v%d' % (op, r, r, tmp))
    full_reduce(MX, V_T2, 'v_max_f32')
    a('v_and_b32 v%d, 3, v%d' % (V_T2, V_L))
    a('v_lshlrev_b32 v%d, 4, v%d' % (V_T2, V_T2))
    a('s_lshl_b32 s%d, s%d, 2' % (S_T4, S_W))
    a('v_add_u32 v%d, s%d, v%d' % (V_T3, S_T4, V_T2))
    a('s_mov_b64 exec, 15')
    a('ds_write_b32 v%d, v%d offset:%d' % (V_T3, MX, L_MAX))
    a('s_mov_b64 exec, -1')
    a('s_waitcnt lgkmcnt(0)')
    a('s_barrier')
    MM = V_BF
    a('ds_read_b128 v[%d:%d], v%d offset:%d' % (MM, MM+3, V_T2, L_MAX))
    a('v_bfe_u32 v%d, v%d, 3, 2' % (V_RL, V_L))
    a('v_lshlrev_b32 v%d, 4, v%d' % (V_RL, V_RL))
    a('ds_read_b128 v[%d:%d], v%d offset:%d' % (MM+4, MM+7, V_RL, L_MAX))
    a('s_waitcnt lgkmcnt(0)')
    a('v_max3_f32 v%d, v%d, v%d, v%d' % (MM, MM, MM+1, MM+2))
    a('v_max_f32 v%d, v%d, v%d' % (MM, MM, MM+3))
    a('v_mul_f32 v%d, s%d, v%d' % (MM, S_C, MM))
    a('v_max3_f32 v%d, v%d, v%d, v%d' % (MM+4, MM+4, MM+5, MM+6))
    a('v_max_f32 v%d, v%d, v%d' % (MM+4, MM+4, MM+7))
    a('v_mul_f32 v%d, s%d, v%d' % (V_OG+2, S_C, MM+4))
    for m in range(4):
        a('v_fma_f32 v%d, v%d, s%d, -v%d' % (V_S+m, V_S+m, S_C, MM))
    for m in range(4):
        a('v_exp_f32 v%d, v%d' % (V_S+m, V_S+m))
    a('v_add_f32 v%d, v%d, v%d' % (MX, V_S, V_S+1))
    a('v_add_f32 v%d, v%d, v%d' % (MM+1, V_S+2, V_S+3))
    a('v_add_f32 v%d, v%d, v%d' % (MX, MX, MM+1))
    full_reduce(MX, MM+1, 'v_add_f32')
    a('s_mov_b64 exec, 15')
    a('ds_write_b32 v%d, v%d offset:%d' % (V_T3, MX, L_LS))
    a('s_mov_b64 exec, -1')
    PF = V_QF
    for m in range(4):
        a('v_mov_b32_dpp v%d, v%d row_ror:12 row_mask:0xf bank_mask:0xf' % (MM+4+m, V_S+m))
    for m in range(4):
        a('v_cvt_pk_bf16_f32 v%d, v%d, v%d' % (PF+2*m, V_S+m, MM+4+m))
    for m in range(4):
        a('v_mov_b32_dpp v%d, v%d row_ror:8 row_mask:0xf bank_mask:0xf' % (PF+2*m+1, PF+2*m))
    a('s_waitcnt lgkmcnt(0)')
    a('s_barrier')
    a('ds_read_b128 v[%d:%d], v%d offset:%d' % (MM, MM+3, V_RL, L_LS))
    a('s_waitcnt lgkmcnt(0)')
    a('v_add_f32 v%d, v%d, v%d' % (MM, MM, MM+1))
    a('v_add_f32 v%d, v%d, v%d' % (MM+2, MM+2, MM+3))
    a('v_add_f32 v%d, v%d, v%d' % (MM, MM, MM+2))
    a('v_log_f32 v%d, v%d' % (MM+1, MM))
    a('v_rcp_f32 v%d, v%d' % (V_RL, MM))
    a('v_add_f32 v%d, v%d, v%d' % (V_OG+2, V_OG+2, MM+1))
    stamp(7)

    a.wait_vm(th[3])
    a('s_mov_b32 s%d, 20000' % S_CNT)
    a('L_h:')
    a('v_cmp_eq_u64 vcc, s[%d:%d], v[%d:%d]' % (S_TAG, S_TAG+1, HG2+2, HG2+3))
    for k in range(1, 4):
        a('v_cmp_eq_u64 s[%d:%d], s[%d:%d], v[%d:%d]' % (S_T0, S_T0+1, S_TAG, S_TAG+1, HG2+4*k+2, HG2+4*k+3))
        a('s_and_b64 vcc, vcc, s[%d:%d]' % (S_T0, S_T0+1))
    a('s_cmp_eq_u64 vcc, -1')
    a('s_cbranch_scc1 L_h_ok')
    a('s_sub_u32 s%d, s%d, 1' % (S_CNT, S_CNT))
    a('s_cbranch_scc1 L_h_ok')
    for k in range(4):
        a('buffer_load_dwordx4 v[%d:%d], v%d, s[%d:%d], s%d offen sc1' % (HG2+4*k, HG2+4*k+3, V_T1, SRD_WS, SRD_WS+3, hs[k]))
    a('s_waitcnt vmcnt(0)')
    a('s_branch L_h')
    a('L_h_ok:')
    GA = V_BF; UP = V_BF+2; TT = V_BF+4
    for e in range(2):
        a('v_add_f32 v%d, v%d, v%d' % (GA+e, HG2+e, HG2+4+e))
        a('v_add_f32 v%d, v%d, v%d' % (UP+e, HG2+8+e, HG2+12+e))
    def rnd_pair(r0, r1, tmp):
        a('v_cvt_pk_bf16_f32 v%d, v%d, v%d' % (tmp, r0, r1))
        a('v_lshlrev_b32 v%d, 16, v%d' % (r0, tmp))
        a('v_and_b32 v%d, s%d, v%d' % (r1, S_MASK, tmp))
    rnd_pair(GA, GA+1, TT); rnd_pair(UP, UP+1, TT+1)
    k1 = -2.0 * 1.4426950408889634 * 0.7978845608028654
    k3 = k1 * 0.044715
    a('s_mov_b32 s%d, 0x%08x' % (S_T4, f2u(k1)))
    a('s_mov_b32 s%d, 0x%08x' % (S_T5, f2u(k3)))
    for e in range(2):
        a('v_mul_f32 v%d, v%d, v%d' % (TT+2+e, GA+e, GA+e))
        a('v_mov_b32 v%d, s%d' % (TT+4+e, S_T4))
        a('v_fma_f32 v%d, v%d, s%d, v%d' % (TT+2+e, TT+2+e, S_T5, TT+4+e))
        a('v_mul_f32 v%d, v%d, v%d' % (TT+2+e, TT+2+e, GA+e))
        a('v_exp_f32 v%d, v%d' % (TT+2+e, TT+2+e))
        a('v_add_f32 v%d, 1.0, v%d' % (TT+2+e, TT+2+e))
        a('v_rcp_f32 v%d, v%d' % (TT+2+e, TT+2+e))
        a('v_mul_f32 v%d, v%d, v%d' % (GA+e, GA+e, TT+2+e))
    rnd_pair(GA, GA+1, TT)
    for e in range(2):
        a('v_mul_f32 v%d, v%d, v%d' % (GA+e, GA+e, UP+e))
    a('v_cvt_pk_bf16_f32 v%d, v%d, v%d' % (V_HA, GA, GA+1))
    a('v_mov_b32 v%d, 0' % (V_HA+1))

    WO_T = []; WD_T = []
    def issue_WO(kk):
        WO_T.append(a.vm('buffer_load_dwordx4 v[%d:%d], v%d, s[%d:%d], s%d offen offset:%d nt' % (V_WO+4*kk, V_WO+4*kk+3, V_WOOFF, SRD_WO, SRD_WO+3, S_WO, kk*1024)))
    def issue_WD(kk):
        WD_T.append(a.vm('buffer_load_dwordx4 v[%d:%d], v%d, s[%d:%d], s%d offen offset:%d nt' % (V_WD+4*kk, V_WD+4*kk+3, V_WDOFF, SRD_WD, SRD_WD+3, S_WD, kk*1024)))
    rest = [('V', k) for k in range(nv, 16)] + [('WD', 0), ('WD', 1)] + [('WO', k) for k in range(4)]
    def issue_next(n):
        for _ in range(n):
            if not rest: return
            kind, k = rest.pop(0)
            if kind == 'V': issue_V(k)
            elif kind == 'WD': issue_WD(k)
            else: issue_WO(k)
    V_OPR = V_AOFF
    a('v_and_b32 v%d, 1, v%d' % (V_T, V_L))
    a('v_mul_u32_u24 v%d, %d, v%d' % (V_T, 4*OP_J, V_T))
    a('v_bfe_u32 v%d, v%d, 1, 2' % (V_T2, V_L))
    a('v_lshl_add_u32 v%d, v%d, 4, v%d' % (V_T, V_T2, V_T))
    a('v_bfe_u32 v%d, v%d, 3, 2' % (V_T2, V_L))
    a('v_lshl_add_u32 v%d, v%d, 2, v%d' % (V_T, V_T2, V_T))
    a('s_lshl_b32 s%d, s%d, 6' % (S_T4, S_W))
    a('s_add_u32 s%d, s%d, %d' % (S_T4, S_T4, L_OP))
    a('v_add_u32 v%d, s%d, v%d' % (V_OPR, S_T4, V_T))
    V_OPW = V_T3
    a('s_lshl_b32 s%d, s%d, 8' % (S_T4, S_W))
    a('s_add_u32 s%d, s%d, %d' % (S_T4, S_T4, L_OP))
    a('v_lshlrev_b32 v%d, 4, v%d' % (V_OPW, V_L))
    a('v_add_u32 v%d, s%d, v%d' % (V_OPW, S_T4, V_OPW))
    V_OST = V_T1
    a('v_lshlrev_b32 v%d, 9, v%d' % (V_OST, V_T2))
    a('v_and_b32 v%d, 7, v%d' % (V_T, V_L))
    a('v_lshl_add_u32 v%d, v%d, 4, v%d' % (V_OST, V_T, V_OST))
    a('s_lshl_b32 s%d, s%d, 7' % (S_T4, S_W))
    a('v_add_u32 v%d, s%d, v%d' % (V_OST, S_T4, V_OST))
    V_H2 = V_KOFF
    a('v_and_b32 v%d, 7, v%d' % (V_H2, V_L))
    a('v_lshlrev_b32 v%d, 16, v%d' % (V_H2, V_H2))
    a('v_bfe_u32 v%d, v%d, 3, 1' % (V_T, V_L))
    a('v_lshl_add_u32 v%d, v%d, 6, v%d' % (V_H2, V_T, V_H2))
    a('v_lshrrev_b32 v%d, 4, v%d' % (V_T, V_L))
    a('v_lshl_add_u32 v%d, v%d, 4, v%d' % (V_H2, V_T, V_H2))
    a('s_lshl_b32 s%d, s%d, 7' % (S_T4, S_W))
    a('v_add_u32 v%d, s%d, v%d' % (V_H2, S_T4, V_H2))
    for Tg in range(2):
        for p in range(4):
            kk0 = 8*Tg + 2*p
            a.wait_vm(V_Tk[kk0+1])
            for m in range(4):
                for e in range(2):
                    j = 2*m + e
                    a('v_perm_b32 v%d, v%d, v%d, s%d' % (V_BF + 4*j + p, vreg(kk0+1) + m, vreg(kk0) + m, S_PHI if e else S_PLO))
            issue_next(2)
        for j in range(8):
            cs = '0' if Tg == 0 else 'v[%d:%d]' % (V_ACC+4*j, V_ACC+4*j+3)
            a('v_mfma_f32_16x16x32_bf16 v[%d:%d], v[%d:%d], v[%d:%d], %s' % (V_ACC+4*j, V_ACC+4*j+3, PF+4*Tg, PF+4*Tg+3, V_BF+4*j, V_BF+4*j+3, cs))
    issue_next(99)
    stamp(8)
    a('s_mov_b64 exec, 0xffff')
    for j in range(8):
        a('ds_write_b128 v%d, v[%d:%d] offset:%d' % (V_OPW, V_ACC+4*j, V_ACC+4*j+3, j*OP_J))
    a('s_mov_b64 exec, -1')
    a('s_waitcnt lgkmcnt(0)')
    a('s_barrier')
    R = V_VA
    for jj in range(4):
        for wp in range(4):
            a('ds_read_b32 v%d, v%d offset:%d' % (R+4*jj+wp, V_OPR, jj*OP_J + wp*256))
    for jj in range(4):
        a('s_waitcnt lgkmcnt(%d)' % (12 - 4*jj))
        a('v_add_f32 v%d, v%d, v%d' % (R+4*jj, R+4*jj, R+4*jj+1))
        a('v_add_f32 v%d, v%d, v%d' % (R+4*jj+2, R+4*jj+2, R+4*jj+3))
        a('v_add_f32 v%d, v%d, v%d' % (R+4*jj, R+4*jj, R+4*jj+2))
        a('v_mul_f32 v%d, v%d, v%d' % (R+4*jj, R+4*jj, V_RL))
    a('v_cvt_pk_bf16_f32 v%d, v%d, v%d' % (V_OG, R, R+4))
    a('v_cvt_pk_bf16_f32 v%d, v%d, v%d' % (V_OG+1, R+8, R+12))
    a('s_mov_b64 exec, 0xffffffff')
    a.vm('buffer_store_dwordx4 v[%d:%d], v%d, s[%d:%d], s%d offen sc1' % (V_OG, V_OG+3, V_OST, SRD_WS, SRD_WS+3, S_PUBO))
    a('s_mov_b64 exec, -1')
    stamp(9)

    BF2 = V_BF
    for j in range(8):
        a('v_mov_b32 v%d, 0' % (BF2 + 2*j + 1))
    a.wait_vm(WD_T[1])
    for m in range(4):
        for e in range(2):
            j = 2*m + e
            a('v_perm_b32 v%d, v%d, v%d, s%d' % (BF2 + 2*j, V_WD + 4 + m, V_WD + m, S_PHI if e else S_PLO))
    for j in range(8):
        a('v_mfma_f32_16x16x16_bf16 v[%d:%d], v[%d:%d], v[%d:%d], 0' % (V_ACC+4*j, V_ACC+4*j+3, V_HA, V_HA+1, BF2+2*j, BF2+2*j+1))
    red_publish(S_PUBG, V_VB)
    a('v_add_u32 v%d, 16384, v%d' % (V_REDW, V_REDW))
    a('v_add_u32 v%d, 16384, v%d' % (V_REDR, V_REDR))
    G2 = V_VA
    a('s_add_u32 s%d, s%d, 16384' % (S_T4, S_H2))
    a('s_add_u32 s%d, s%d, 32768' % (S_T5, S_H2))
    a('s_add_u32 s%d, s%d, 49152' % (S_T6, S_H2))
    gs = [S_H2, S_T4, S_T5, S_T6]
    tg = None
    for s in range(4):
        tg = a.vm('buffer_load_dwordx4 v[%d:%d], v%d, s[%d:%d], s%d offen sc1' % (G2+4*s, G2+4*s+3, V_H2, SRD_WS, SRD_WS+3, gs[s]))
    a.wait_vm(WO_T[3])
    for p in range(2):
        for m in range(4):
            for e in range(2):
                j = 2*m + e
                a('v_perm_b32 v%d, v%d, v%d, s%d' % (V_BF + 2*j + p, V_WO + 4*(2*p+1) + m, V_WO + 4*(2*p) + m, S_PHI if e else S_PLO))
    a.wait_vm(tg)
    a('s_mov_b32 s%d, 200000' % S_CNT)
    a('L_g2:')
    a('v_cmp_eq_u32 vcc, s%d, v%d' % (S_TAG, G2+3))
    for s in range(1, 4):
        a('v_cmp_eq_u32 s[%d:%d], s%d, v%d' % (S_T0, S_T0+1, S_TAG, G2+4*s+3))
        a('s_and_b64 vcc, vcc, s[%d:%d]' % (S_T0, S_T0+1))
    a('s_cmp_eq_u64 vcc, -1')
    a('s_cbranch_scc1 L_g2_ok')
    a('s_sub_u32 s%d, s%d, 1' % (S_CNT, S_CNT))
    a('s_cbranch_scc1 L_g2_ok')
    for s in range(4):
        a('buffer_load_dwordx4 v[%d:%d], v%d, s[%d:%d], s%d offen sc1' % (G2+4*s, G2+4*s+3, V_H2, SRD_WS, SRD_WS+3, gs[s]))
    a('s_waitcnt vmcnt(0)')
    a('s_branch L_g2')
    a('L_g2_ok:')
    stamp(10)
    E = V_VA + 16
    a('v_max3_f32 v%d, v%d, v%d, v%d' % (E+4, G2+2, G2+6, G2+10))
    a('v_max_f32 v%d, v%d, v%d' % (E+4, E+4, G2+14))
    for s in range(4): a('v_sub_f32 v%d, v%d, v%d' % (E+s, G2+4*s+2, E+4))
    for s in range(4): a('v_exp_f32 v%d, v%d' % (E+s, E+s))
    a('v_add_f32 v%d, v%d, v%d' % (E+4, E, E+1))
    a('v_add_f32 v%d, v%d, v%d' % (E+5, E+2, E+3))
    a('v_add_f32 v%d, v%d, v%d' % (E+4, E+4, E+5))
    a('v_rcp_f32 v%d, v%d' % (E+4, E+4))
    O4 = E + 8
    U = E + 12
    for s in range(4):
        a('v_lshlrev_b32 v%d, 16, v%d' % (U, G2+4*s))
        a('v_and_b32 v%d, s%d, v%d' % (U+1, S_MASK, G2+4*s))
        a('v_lshlrev_b32 v%d, 16, v%d' % (U+2, G2+4*s+1))
        a('v_and_b32 v%d, s%d, v%d' % (U+3, S_MASK, G2+4*s+1))
        for d in range(4):
            if s == 0: a('v_mul_f32 v%d, v%d, v%d' % (O4+d, U+d, E))
            else: a('v_fmac_f32 v%d, v%d, v%d' % (O4+d, U+d, E+s))
    for d in range(4): a('v_mul_f32 v%d, v%d, v%d' % (O4+d, O4+d, E+4))
    AO = V_HA
    a('v_cvt_pk_bf16_f32 v%d, v%d, v%d' % (AO, O4, O4+1))
    a('v_cvt_pk_bf16_f32 v%d, v%d, v%d' % (AO+1, O4+2, O4+3))
    for j in range(8):
        a('v_mfma_f32_16x16x16_bf16 v[%d:%d], v[%d:%d], v[%d:%d], 0' % (V_ACC+4*j, V_ACC+4*j+3, AO, AO+1, V_BF+2*j, V_BF+2*j+1))
    red_publish(S_PUBS, V_VB)
    a('s_cmp_lg_u32 s%d, 0' % S_W)
    a('s_cbranch_scc1 L_fin')
    a('v_lshrrev_b32 v%d, 3, v%d' % (V_T, V_L))
    a('v_lshlrev_b32 v%d, 12, v%d' % (V_T, V_T))
    a('v_and_b32 v%d, 7, v%d' % (V_T2, V_L))
    a('v_lshl_add_u32 v%d, v%d, 4, v%d' % (V_T, V_T2, V_T))
    a('s_and_b32 s%d, s%d, 7' % (S_T4, S_R))
    a('s_lshl_b32 s%d, s%d, 17' % (S_T4, S_T4))
    a('s_lshl_b32 s%d, s%d, 9' % (S_T5, S_H))
    a('s_add_u32 s%d, s%d, s%d' % (S_T4, S_T4, S_T5))
    a('s_lshr_b32 s%d, s%d, 3' % (S_T5, S_R))
    a('s_lshl_b32 s%d, s%d, 7' % (S_T5, S_T5))
    a('s_add_u32 s%d, s%d, s%d' % (S_T4, S_T4, S_T5))
    GS = V_BF
    GG = V_BF + 16
    so = [S_K, S_V, S_A, S_WO]; go = [S_WD, S_QG, S_HG, S_H2]
    for i in range(4):
        a('s_add_u32 s%d, s%d, 0x%x' % (so[i], S_T4, WS_S + i*8*4096))
        a('s_add_u32 s%d, s%d, 0x%x' % (go[i], S_T4, WS_G + i*8*4096))
    a('v_mov_b32 v%d, 0' % (GG+12))
    a('v_mov_b32 v%d, 0' % (GG+13))
    a('v_mov_b32 v%d, s%d' % (GG+14, S_TAG))
    a('v_mov_b32 v%d, s%d' % (GG+15, S_TAG+1))
    def g_issue():
        for i in range(3):
            a('buffer_load_dwordx4 v[%d:%d], v%d, s[%d:%d], s%d offen sc1' % (GG+4*i, GG+4*i+3, V_T, SRD_WS, SRD_WS+3, go[i]))
        a('s_mov_b64 exec, 0xffffffff')
        a('buffer_load_dwordx4 v[%d:%d], v%d, s[%d:%d], s%d offen sc1' % (GG+12, GG+15, V_T, SRD_WS, SRD_WS+3, go[3]))
        a('s_mov_b64 exec, -1')
    def s_issue():
        for i in range(4):
            a('buffer_load_dwordx4 v[%d:%d], v%d, s[%d:%d], s%d offen sc1' % (GS+4*i, GS+4*i+3, V_T, SRD_WS, SRD_WS+3, so[i]))
    def chk(base, lab_ok):
        a('v_cmp_eq_u64 vcc, s[%d:%d], v[%d:%d]' % (S_TAG, S_TAG+1, base+2, base+3))
        for i in range(1, 4):
            a('v_cmp_eq_u64 s[%d:%d], s[%d:%d], v[%d:%d]' % (S_T0, S_T0+1, S_TAG, S_TAG+1, base+4*i+2, base+4*i+3))
            a('s_and_b64 vcc, vcc, s[%d:%d]' % (S_T0, S_T0+1))
        a('s_cmp_eq_u64 vcc, -1')
        a('s_cbranch_scc1 %s' % lab_ok)
    a('s_mov_b32 s%d, 200000' % S_CNT)
    a('L_f1:')
    g_issue()
    a('s_waitcnt vmcnt(0)')
    chk(GG, 'L_f1_ok')
    a('s_sub_u32 s%d, s%d, 1' % (S_CNT, S_CNT))
    a('s_cbranch_scc0 L_f1')
    a('L_f1_ok:')
    a('s_mov_b32 s%d, 200000' % S_CNT)
    a('L_f2:')
    s_issue()
    a('s_waitcnt vmcnt(0)')
    chk(GS, 'L_f2_ok')
    a('s_sub_u32 s%d, s%d, 1' % (S_CNT, S_CNT))
    a('s_cbranch_scc0 L_f2')
    a('L_f2_ok:')
    for base in (GS, GG):
        for e in range(2):
            a('v_add_f32 v%d, v%d, v%d' % (base+e, base+e, base+4+e))
            a('v_add_f32 v%d, v%d, v%d' % (base+8+e, base+8+e, base+12+e))
        for e in range(2):
            a('v_add_f32 v%d, v%d, v%d' % (base+e, base+e, base+8+e))
    vals = [GS, GS+1, GG, GG+1]
    tmps = [GS+4, GS+5, GS+6, GS+7]
    for r in vals:
        a('v_add_f32_dpp v%d, v%d, v%d row_ror:8 row_mask:0xf bank_mask:0xf' % (r, r, r))
    for r, t in zip(vals, tmps): a('v_mov_b32 v%d, v%d' % (t, r))
    for r, t in zip(vals, tmps): a('v_permlane16_swap_b32 v%d, v%d' % (r, t))
    for r, t in zip(vals, tmps): a('v_add_f32 v%d, v%d, v%d' % (r, r, t))
    for r, t in zip(vals, tmps): a('v_mov_b32 v%d, v%d' % (t, r))
    for r, t in zip(vals, tmps): a('v_permlane32_swap_b32 v%d, v%d' % (r, t))
    for r, t in zip(vals, tmps): a('v_add_f32 v%d, v%d, v%d' % (r, r, t))
    rnd_pair(GS, GS+1, GS+4)
    rnd_pair(GG, GG+1, GS+5)
    a('s_mov_b32 s%d, 0x%08x' % (S_T5, f2u(-1.4426950408889634)))
    for e in range(2):
        a('v_mul_f32 v%d, s%d, v%d' % (GS+8+e, S_T5, GG+e))
        a('v_exp_f32 v%d, v%d' % (GS+8+e, GS+8+e))
        a('v_add_f32 v%d, 1.0, v%d' % (GS+8+e, GS+8+e))
        a('v_rcp_f32 v%d, v%d' % (GS+8+e, GS+8+e))
        a('v_mul_f32 v%d, v%d, v%d' % (GG+e, GG+e, GS+8+e))
    rnd_pair(GG, GG+1, GS+5)
    for e in range(2):
        a('v_mul_f32 v%d, v%d, v%d' % (GS+e, GS+e, GG+e))
    rnd_pair(GS, GS+1, GS+4)
    a('v_lshlrev_b32 v%d, 16, v%d' % (GS+8, V_XF))
    a('v_and_b32 v%d, s%d, v%d' % (GS+9, S_MASK, V_XF))
    for e in range(2):
        a('v_add_f32 v%d, v%d, v%d' % (GS+e, GS+e, GS+8+e))
    a('v_cvt_pk_bf16_f32 v%d, v%d, v%d' % (GS, GS, GS+1))
    if exp == 'loop':
        a('s_mov_b32 s%d, 1000' % S_CNT)
        a('L_exp:')
        for i in range(8): a('v_add_u32 v%d, v%d, v%d' % (GS+8, GS+8, GS+9))
        a('s_sub_u32 s%d, s%d, 1' % (S_CNT, S_CNT))
        a('s_cbranch_scc0 L_exp')
    if exp == 'line':
        for i in range(1024): a('v_add3_u32 v%d, v%d, v%d, v%d' % (GS+8, GS+8, GS+9, GS+10))
    if exp == 'dbg':
        a('s_memrealtime s[%d:%d]' % (S_T0, S_T0+1))
        a('s_waitcnt lgkmcnt(0)')
        a('v_mov_b32 v%d, s%d' % (GS+8, S_T0))
        a('s_not_b32 s%d, s%d' % (S_T4, S_NONCE))
        a('v_mov_b32 v%d, s%d' % (GS+9, S_T4))
        a('v_mov_b32 v%d, 0' % (GS+10))
        a('s_mov_b64 exec, 1')
        a('buffer_atomic_umax v%d, v%d, s[%d:%d], 0 offen offset:4' % (GS+9, GS+10, SRD_DBG, SRD_DBG+3))
        a('buffer_atomic_umax v%d, v%d, s[%d:%d], 0 offen offset:8' % (GS+8, GS+10, SRD_DBG, SRD_DBG+3))
        a('s_mov_b64 exec, -1')
    a('s_mov_b64 exec, 0xff')
    a('buffer_store_dword v%d, v%d, s[%d:%d], 0 offen' % (GS, V_OUTOFF, SRD_OUT, SRD_OUT+3))
    a('s_mov_b64 exec, -1')
    a('L_fin:')
    if stamps:
        a('s_memrealtime s[%d:%d]' % (S_NONCE, S_NONCE+1))
        a('s_waitcnt lgkmcnt(0)')
        NS = 12
        a('s_lshl_b32 s%d, s2, 2' % S_T4)
        a('s_add_u32 s%d, s%d, s%d' % (S_T4, S_T4, S_W))
        a('s_mul_i32 s%d, s%d, %d' % (S_T4, S_T4, NS*8))
        a('s_add_u32 s%d, s%d, 0x%x' % (S_T4, S_T4, WS_STAMP))
        a('v_mov_b32 v%d, 0' % V_T2)
        a('s_mov_b64 exec, 1')
        for i in range(NS):
            sr = S_STAMP + 2*i if i < 11 else S_NONCE
            a('v_mov_b32 v%d, s%d' % (V_BF, sr))
            a('v_mov_b32 v%d, s%d' % (V_BF+1, sr+1))
            a('buffer_store_dwordx2 v[%d:%d], v%d, s[%d:%d], s%d offen offset:%d' % (V_BF, V_BF+1, V_T2, SRD_WS, SRD_WS+3, S_T4, i*8))
            a('s_waitcnt vmcnt(0)')
    a('L_end:')
    a('s_endpgm')
    body = a.finalize()
    txt = wrap(body, 256, 256, LDS_BYTES, NV + 64, 102, NV, stamps=(1024, 12) if stamps else None)
    open(fname, 'w').write(txt)
    return a

if __name__ == '__main__':
    a = gen(stamps=False, fname='main.s')
    print('nops inserted', a.nops, 'instrs', len(a.ins))
    gen(stamps=True, fname='main_st.s')
    for e in ('loop', 'line', 'dbg'): gen(fname='exp_%s.s' % e, exp=e)
```

```python
import sys, struct
from asmlib import *

def f2u(x): return struct.unpack('<I', struct.pack('<f', x))[0]

WS_A = 0x000000
WS_G = 0x100000
WS_S = 0x200000
WS_O = 0x300000
WS_STAMP = 0x8000000
L_XN = 0; XN_STRIDE = 1056
L_Q = 8704
L_MAX = 9728
L_LS = 9792
L_OP = 10240; OP_J = 1040
L_RED1 = 18688
L_RED2 = L_RED1 + 16384
LDS_BYTES = L_RED2 + 16384

S_W = 3
SRD_X, SRD_K, SRD_V, SRD_A, SRD_WO, SRD_WD, SRD_OUT, SRD_DBG, SRD_WS = 4, 8, 12, 16, 20, 24, 28, 32, 36
S_WQ = 40; S_WG = 44; S_WU = 46
S_H = 42; S_R = 43
S_K = 48; S_V = 49; S_A = 50; S_ASTR = 51; S_WO = 52; S_WD = 53
S_TAG = 54
S_PLO = 56; S_PHI = 57
S_PUB = 58; S_CNT = 59
S_T0 = 60
S_RET = 62
S_T2 = 64
S_T4 = 66; S_T5 = 67; S_T6 = 68; S_T7 = 69
S_QG = 70
S_HG = 71
S_H2 = 72
S_C = 73
S_NONCE = 74
S_MASK = 76
S_PUBG = 77; S_PUBS = 78; S_PUBO = 79
S_STAMP = 80

V_L = 0
V_KOFF = 1
V_VOFF = 2
V_T = 3
V_T1 = 4
V_T2 = 5
V_T3 = 6
V_XF = 7
V_GR = 8
V_OG = 12
V_VA = 16
V_VB = 48
V_BF = 80
V_ACC = 112
V_WO = 144
V_WD = 160
V_QF = 168
V_S = 176
V_HA = 180
V_AOFF = 182
V_PUB = 183
V_REDW = 184
V_REDR = 185
V_OUTOFF = 186
V_WOOFF = 187
V_WDOFF = 188
V_RL = 189
V_NONCE = 190
V_AF = 140
NV = 192

def gen(stamps=False, win=8, fname='out.s', exp=None):
    a = Prog()
    nst = [0]
    def stamp(i):
        if stamps:
            a('s_memrealtime s[%d:%d]' % (S_STAMP + 2*i, S_STAMP + 2*i + 1))
    K_T = []; V_Tk = []
    def issue_K(kk):
        t = a.vm('buffer_load_dwordx4 a[%d:%d], v%d, s[%d:%d], s%d offen nt' % (4*kk, 4*kk+3, V_KOFF, SRD_K, SRD_K+3, S_K))
        a('s_add_u32 s%d, s%d, 4096' % (S_K, S_K))
        K_T.append(t)
    def vreg(kk):
        return (V_VA + 4*kk) if kk < 8 else (V_VB + 4*(kk-8))
    def issue_V(kk):
        r = vreg(kk)
        t = a.vm('buffer_load_dwordx4 v[%d:%d], v%d, s[%d:%d], s%d offen nt' % (r, r+3, V_VOFF, SRD_V, SRD_V+3, S_V))
        a('s_add_u32 s%d, s%d, 4096' % (S_V, S_V))
        V_Tk.append(t)

    a('s_memrealtime s[%d:%d]' % (S_NONCE, S_NONCE+1))
    stamp(0)
    a('s_cmp_ge_u32 s2, 256')
    a('s_cbranch_scc1 L_end')
    a('s_load_dwordx2 s[%d:%d], s[0:1], 0' % (SRD_X, SRD_X+1))
    a('s_load_dwordx2 s[%d:%d], s[0:1], 24' % (S_WQ, S_WQ+1))
    a('s_load_dwordx4 s[%d:%d], s[0:1], 48' % (S_WG, S_WG+3))
    a('s_load_dwordx2 s[%d:%d], s[0:1], 8' % (SRD_K, SRD_K+1))
    a('s_load_dwordx2 s[%d:%d], s[0:1], 80' % (SRD_DBG, SRD_DBG+1))
    a('s_load_dwordx2 s[%d:%d], s[0:1], 16' % (SRD_V, SRD_V+1))
    a('s_load_dwordx2 s[%d:%d], s[0:1], 88' % (SRD_WS, SRD_WS+1))
    a('s_load_dwordx2 s[%d:%d], s[0:1], 32' % (SRD_WO, SRD_WO+1))
    a('s_load_dwordx2 s[%d:%d], s[0:1], 64' % (SRD_WD, SRD_WD+1))
    a('s_load_dwordx2 s[%d:%d], s[0:1], 72' % (SRD_OUT, SRD_OUT+1))
    a('v_lshrrev_b32 v%d, 6, v0' % V_T)
    a('v_readfirstlane_b32 s%d, v%d' % (S_W, V_T))
    a('v_lshrrev_b32 v%d, 5, v0' % V_T1)
    a('v_lshlrev_b32 v%d, 10, v%d' % (V_T1, V_T1))
    a('v_and_b32 v%d, 31, v0' % V_T2)
    a('v_lshl_add_u32 v%d, v%d, 4, v%d' % (V_T1, V_T2, V_T1))
    a('v_lshrrev_b32 v%d, 5, v0' % V_T3)
    a('v_mul_u32_u24 v%d, %d, v%d' % (V_T3, XN_STRIDE, V_T3))
    a('v_lshl_add_u32 v%d, v%d, 4, v%d' % (V_T3, V_T2, V_T3))
    a('v_and_b32 v%d, 63, v0' % V_L)
    for s, n in ((SRD_X, 8192), (SRD_K, 0x4000000), (SRD_V, 0x4000000), (SRD_WO, 0x400000), (SRD_WD, 1792*1024),
                 (SRD_OUT, 8192), (SRD_DBG, 256), (SRD_WS, 0x10000000 if stamps else 0x400000)):
        a('s_mov_b32 s%d, 0x%x' % (s+2, n))
        a('s_mov_b32 s%d, 0x00020000' % (s+3))
    a('s_mov_b32 s%d, 0x00020000' % (SRD_A+3))
    a('s_and_b32 s%d, s2, 7' % S_H)
    a('s_lshr_b32 s%d, s2, 3' % S_R)
    a('s_movk_i32 s%d, 3584' % S_ASTR)
    a('s_mov_b32 s%d, 0x1c0000' % (SRD_A+2))
    a('s_movk_i32 s%d, 128' % S_T4)
    a('s_cmp_lt_u32 s2, 128')
    a('s_cselect_b32 s%d, 8192, s%d' % (S_ASTR, S_ASTR))
    a('s_cselect_b32 s%d, 0x400000, s%d' % (SRD_A+2, SRD_A+2))
    a('s_cselect_b32 s%d, 0, s%d' % (S_T4, S_T4))
    a('s_cmp_ge_u32 s2, 184')
    a('s_cselect_b32 s%d, 184, s%d' % (S_T4, S_T4))
    a('s_cmp_ge_u32 s2, 240')
    a('s_cselect_b32 s%d, 0, s%d' % (SRD_A+2, SRD_A+2))
    a('s_sub_u32 s%d, s2, s%d' % (S_T4, S_T4))
    a('s_lshr_b32 s%d, s%d, 1' % (S_T4, S_T4))
    a('s_lshl_b32 s%d, s%d, 7' % (S_T4, S_T4))
    a('s_and_b32 s%d, s2, 1' % S_T5)
    a('s_lshl_b32 s%d, s%d, 2' % (S_T5, S_T5))
    a('s_add_u32 s%d, s%d, s%d' % (S_T5, S_T5, S_W))
    a('s_lshl_b32 s%d, s%d, 6' % (S_T5, S_T5))
    a('s_mul_i32 s%d, s%d, s%d' % (S_A, S_T5, S_ASTR))
    a('s_add_u32 s%d, s%d, s%d' % (S_A, S_A, S_T4))
    a('v_and_b32 v%d, 0x38, v%d' % (V_AOFF, V_L))
    a('v_mul_u32_u24 v%d, s%d, v%d' % (V_AOFF, S_ASTR, V_AOFF))
    a('v_and_b32 v%d, 7, v%d' % (V_T2, V_L))
    a('v_lshl_add_u32 v%d, v%d, 4, v%d' % (V_AOFF, V_T2, V_AOFF))
    a('v_mul_u32_u24 v%d, %d, v%d' % (V_T, XN_STRIDE, V_T2))
    a('v_and_b32 v%d, 0x38, v%d' % (V_QF, V_L))
    a('v_lshl_add_u32 v%d, v%d, 1, v%d' % (V_QF, V_QF, V_T))
    a('s_lshl_b32 s%d, s%d, 1' % (S_T5, S_T5))
    a('v_add_u32 v%d, s%d, v%d' % (V_QF, S_T5, V_QF))
    a('v_bfe_u32 v%d, v%d, 2, 2' % (V_KOFF, V_L))
    a('v_lshlrev_b32 v%d, 8, v%d' % (V_KOFF, V_KOFF))
    a('v_lshrrev_b32 v%d, 4, v%d' % (V_T, V_L))
    a('v_lshl_add_u32 v%d, v%d, 6, v%d' % (V_KOFF, V_T, V_KOFF))
    a('v_and_b32 v%d, 3, v%d' % (V_T, V_L))
    a('v_lshl_add_u32 v%d, v%d, 4, v%d' % (V_KOFF, V_T, V_KOFF))
    a('v_lshlrev_b32 v%d, 4, v%d' % (V_VOFF, V_L))
    a('s_lshr_b32 s%d, s%d, 2' % (S_T4, S_R))
    a('s_lshl_b32 s%d, s%d, 3' % (S_T4, S_T4))
    a('s_add_u32 s%d, s%d, s%d' % (S_T4, S_T4, S_H))
    a('s_lshl_b32 s%d, s%d, 20' % (S_K, S_T4))
    a('s_and_b32 s%d, s%d, 3' % (S_T4, S_R))
    a('s_lshl_b32 s%d, s%d, 16' % (S_T4, S_T4))
    a('s_add_u32 s%d, s%d, s%d' % (S_K, S_K, S_T4))
    a('s_lshl_b32 s%d, s%d, 10' % (S_T4, S_W))
    a('s_add_u32 s%d, s%d, s%d' % (S_K, S_K, S_T4))
    a('s_add_u32 s%d, s%d, 0x%x' % (S_K, S_K, 3072*256))
    a('s_mov_b32 s%d, s%d' % (S_V, S_K))
    a('s_waitcnt lgkmcnt(0)')
    stamp(1)
    a('s_cmp_lt_u32 s2, 128')
    a('s_cselect_b64 s[%d:%d], s[%d:%d], s[%d:%d]' % (SRD_A, SRD_A+1, S_WQ, S_WQ+1, S_WG, S_WG+1))
    a('s_cmp_ge_u32 s2, 184')
    a('s_cselect_b64 s[%d:%d], s[%d:%d], s[%d:%d]' % (SRD_A, SRD_A+1, S_WU, S_WU+1, SRD_A, SRD_A+1))
    X0 = V_VA
    tx0 = a.vm('buffer_load_dwordx4 v[%d:%d], v%d, s[%d:%d], 0 offen' % (X0, X0+3, V_T1, SRD_X, SRD_X+3))
    tx1 = a.vm('buffer_load_dwordx4 v[%d:%d], v%d, s[%d:%d], 0 offen offset:512' % (X0+4, X0+7, V_T1, SRD_X, SRD_X+3))
    W_T = []
    for kk in range(8):
        r = V_VB + 4*kk
        W_T.append(a.vm('buffer_load_dwordx4 v[%d:%d], v%d, s[%d:%d], s%d offen nt' % (r, r+3, V_AOFF, SRD_A, SRD_A+3, S_A)))
        if kk < 7: a('s_add_u32 s%d, s%d, s%d' % (S_A, S_A, S_ASTR))
    a('s_or_b32 s%d, s2, s%d' % (S_T4, S_W))
    a('s_cmp_lg_u32 s%d, 0' % S_T4)
    a('s_cbranch_scc1 L_nononce')
    a('s_or_b32 s%d, s%d, 1' % (S_T4, S_NONCE))
    a('v_mov_b32 v%d, s%d' % (V_T, S_T4))
    a('v_mov_b32 v%d, 0' % V_T2)
    a('s_mov_b64 exec, 1')
    a('buffer_store_dword v%d, v%d, s[%d:%d], 0 offen sc0 sc1' % (V_T, V_T2, SRD_DBG, SRD_DBG+3))
    a('s_mov_b64 exec, -1')
    a('L_nononce:')
    a('v_mov_b32 v%d, 0' % V_T2)
    tnonce = a.vm('buffer_load_dword v%d, v%d, s[%d:%d], 0 offen sc1' % (V_NONCE, V_T2, SRD_DBG, SRD_DBG+3))
    a('s_lshl_b32 s%d, s%d, 10' % (S_T4, S_H))
    a('s_and_b32 s%d, s%d, 7' % (S_T5, S_R))
    a('s_lshl_b32 s%d, s%d, 7' % (S_T5, S_T5))
    a('s_add_u32 s%d, s%d, s%d' % (S_T4, S_T4, S_T5))
    a('s_lshr_b32 s%d, s%d, 3' % (S_T5, S_R))
    a('s_lshl_b32 s%d, s%d, 2' % (S_T5, S_T5))
    a('s_add_u32 s%d, s%d, s%d' % (S_T4, S_T4, S_T5))
    a('v_and_b32 v%d, 7, v%d' % (V_OUTOFF, V_L))
    a('v_lshlrev_b32 v%d, 4, v%d' % (V_OUTOFF, V_OUTOFF))
    a('v_add_u32 v%d, s%d, v%d' % (V_OUTOFF, S_T4, V_OUTOFF))
    txf = a.vm('buffer_load_dword v%d, v%d, s[%d:%d], 0 offen' % (V_XF, V_OUTOFF, SRD_X, SRD_X+3))
    NK0 = 4
    for kk in range(NK0): issue_K(kk)

    a('s_mov_b32 s%d, 0x05040100' % S_PLO)
    a('s_mov_b32 s%d, 0x07060302' % S_PHI)
    a('s_mov_b32 s%d, 0xffff0000' % S_MASK)
    a('s_mov_b32 s%d, 0x%08x' % (S_C, f2u(128**-0.5 * 1.4426950408889634)))
    a('v_bfe_u32 v%d, v%d, 4, 1' % (V_REDW, V_L))
    a('v_lshlrev_b32 v%d, 13, v%d' % (V_REDW, V_REDW))
    a('v_and_b32 v%d, 15, v%d' % (V_T, V_L))
    a('v_lshl_add_u32 v%d, v%d, 4, v%d' % (V_REDW, V_T, V_REDW))
    a('s_lshl_b32 s%d, s%d, 8' % (S_T4, S_W))
    a('s_add_u32 s%d, s%d, %d' % (S_T4, S_T4, L_RED1))
    a('v_add_u32 v%d, s%d, v%d' % (V_REDW, S_T4, V_REDW))
    a('v_lshrrev_b32 v%d, 5, v%d' % (V_REDR, V_L))
    a('v_lshlrev_b32 v%d, 13, v%d' % (V_REDR, V_REDR))
    a('v_and_b32 v%d, 7, v%d' % (V_T, V_L))
    a('v_lshl_add_u32 v%d, v%d, 4, v%d' % (V_REDR, V_T, V_REDR))
    a('v_bfe_u32 v%d, v%d, 3, 2' % (V_T2, V_L))
    a('v_lshl_add_u32 v%d, v%d, 2, v%d' % (V_REDR, V_T2, V_REDR))
    a('s_lshl_b32 s%d, s%d, 11' % (S_T4, S_W))
    a('s_add_u32 s%d, s%d, %d' % (S_T4, S_T4, L_RED1))
    a('v_add_u32 v%d, s%d, v%d' % (V_REDR, S_T4, V_REDR))
    a('v_lshrrev_b32 v%d, 3, v%d' % (V_PUB, V_L))
    a('v_lshlrev_b32 v%d, 9, v%d' % (V_PUB, V_PUB))
    a('v_lshl_add_u32 v%d, v%d, 4, v%d' % (V_PUB, V_T, V_PUB))
    a('s_lshl_b32 s%d, s%d, 7' % (S_T4, S_W))
    a('v_add_u32 v%d, s%d, v%d' % (V_PUB, S_T4, V_PUB))
    a('s_lshl_b32 s%d, s2, 12' % S_PUB)
    a('s_and_b32 s%d, s%d, 7' % (S_T4, S_R))
    a('s_lshr_b32 s%d, s%d, 3' % (S_T5, S_R))
    a('s_lshl_b32 s%d, s%d, 2' % (S_T6, S_H))
    a('s_add_u32 s%d, s%d, s%d' % (S_T6, S_T6, S_T5))
    a('s_lshl_b32 s%d, s%d, 5' % (S_PUBS, S_T4))
    a('s_add_u32 s%d, s%d, s%d' % (S_PUBS, S_PUBS, S_T6))
    a('s_lshl_b32 s%d, s%d, 12' % (S_PUBS, S_PUBS))
    a('s_add_u32 s%d, s%d, 0x%x' % (S_PUBS, S_PUBS, WS_S))
    a('s_lshl_b32 s%d, s%d, 2' % (S_WO, S_T6))
    a('s_add_u32 s%d, s%d, s%d' % (S_WO, S_WO, S_W))
    a('s_lshl_b32 s%d, s%d, 15' % (S_WO, S_WO))
    a('s_lshl_b32 s%d, s%d, 7' % (S_T7, S_T4))
    a('s_add_u32 s%d, s%d, s%d' % (S_WO, S_WO, S_T7))
    a('s_lshl_b32 s%d, s%d, 3' % (S_T6, S_T5))
    a('s_add_u32 s%d, s%d, s%d' % (S_T6, S_T6, S_H))
    a('s_lshl_b32 s%d, s%d, 2' % (S_WD, S_T6))
    a('s_add_u32 s%d, s%d, s%d' % (S_WD, S_WD, S_W))
    a('s_lshl_b32 s%d, s%d, 14' % (S_WD, S_WD))
    a('s_add_u32 s%d, s%d, s%d' % (S_WD, S_WD, S_T7))
    a('s_lshl_b32 s%d, s%d, 5' % (S_PUBG, S_T4))
    a('s_add_u32 s%d, s%d, s%d' % (S_PUBG, S_PUBG, S_T6))
    a('s_lshl_b32 s%d, s%d, 12' % (S_PUBG, S_PUBG))
    a('s_add_u32 s%d, s%d, 0x%x' % (S_PUBG, S_PUBG, WS_G))
    a('s_min_u32 s%d, s%d, 27' % (S_T6, S_T6))
    a('s_lshl_b32 s%d, s%d, 13' % (S_HG, S_T6))
    a('s_add_u32 s%d, s%d, 0x%x' % (S_HG, S_HG, WS_A + 128*4096))
    a('s_lshl_b32 s%d, s%d, 16' % (S_QG, S_H))
    a('s_lshr_b32 s%d, s%d, 2' % (S_T6, S_R))
    a('s_lshl_b32 s%d, s%d, 9' % (S_T6, S_T6))
    a('s_add_u32 s%d, s%d, s%d' % (S_QG, S_QG, S_T6))
    a('s_lshl_b32 s%d, s%d, 11' % (S_H2, S_H))
    a('s_lshl_b32 s%d, s%d, 9' % (S_T6, S_T5))
    a('s_add_u32 s%d, s%d, s%d' % (S_H2, S_H2, S_T6))
    a('s_add_u32 s%d, s%d, 0x%x' % (S_H2, S_H2, WS_O))
    a('s_lshl_b32 s%d, s2, 11' % S_PUBO)
    a('s_add_u32 s%d, s%d, 0x%x' % (S_PUBO, S_PUBO, WS_O))
    a('v_bfe_u32 v%d, v%d, 3, 1' % (V_T2, V_L))
    a('v_lshrrev_b32 v%d, 4, v%d' % (V_T1, V_L))
    a('v_lshlrev_b32 v%d, 2, v%d' % (V_WOOFF, V_T2))
    a('v_add_u32 v%d, v%d, v%d' % (V_WOOFF, V_WOOFF, V_T1))
    a('v_lshlrev_b32 v%d, 11, v%d' % (V_WDOFF, V_WOOFF))
    a('v_lshlrev_b32 v%d, 12, v%d' % (V_WOOFF, V_WOOFF))
    a('v_lshl_add_u32 v%d, v%d, 4, v%d' % (V_WDOFF, V_T, V_WDOFF))
    a('v_lshl_add_u32 v%d, v%d, 4, v%d' % (V_WOOFF, V_T, V_WOOFF))

    F = V_VA + 8
    a.wait_vm(tx1)
    stamp(2)
    for k in range(8):
        a('v_lshlrev_b32 v%d, 16, v%d' % (F+2*k, X0+k))
        a('v_and_b32 v%d, s%d, v%d' % (F+2*k+1, S_MASK, X0+k))
    T = V_VA + 24
    def tree_sum(regs, dst, op='v_add_f32'):
        regs = list(regs)
        tmp = []
        for i in range(0, len(regs), 2):
            a('%s v%d, v%d, v%d' % (op, T + i//2, regs[i], regs[i+1])); tmp.append(T + i//2)
        while len(tmp) > 1:
            nt = []
            for i in range(0, len(tmp), 2):
                a('%s v%d, v%d, v%d' % (op, tmp[i], tmp[i], tmp[i+1])); nt.append(tmp[i])
            tmp = nt
        if tmp[0] != dst: a('v_mov_b32 v%d, v%d' % (dst, tmp[0]))
    def half_reduce(r, tmp, op='v_add_f32'):
        for n in (8, 4, 2, 1):
            a('%s_dpp v%d, v%d, v%d row_ror:%d row_mask:0xf bank_mask:0xf' % (op, r, r, r, n))
        a('v_mov_b32 v%d, v%d' % (tmp, r))
        a('v_permlane16_swap_b32 v%d, v%d' % (r, tmp))
        a('%s v%d, v%d, v%d' % (op, r, r, tmp))
    MEAN = X0; VAR = X0+1; TMP = X0+2; MB = X0+3; RS = X0+4
    tree_sum(range(F, F+16), T)
    half_reduce(T, TMP)
    a('v_mul_f32 v%d, 0x%08x, v%d' % (MEAN, f2u(1.0/512), T))
    for k in range(16):
        a('v_sub_f32 v%d, v%d, v%d' % (V_BF+k, F+k, MEAN))
    a('v_mul_f32 v%d, v%d, v%d' % (T, V_BF, V_BF))
    a('v_mul_f32 v%d, v%d, v%d' % (T+1, V_BF+1, V_BF+1))
    for k in range(2, 16):
        a('v_fmac_f32 v%d, v%d, v%d' % (T + (k & 1), V_BF+k, V_BF+k))
    a('v_add_f32 v%d, v%d, v%d' % (T, T, T+1))
    half_reduce(T, TMP)
    a('v_mul_f32 v%d, 0x%08x, v%d' % (VAR, f2u(1.0/512), T))
    def rnd_bf(r):
        a('v_cvt_pk_bf16_f32 v%d, v%d, v%d' % (r, r, r))
        a('v_lshlrev_b32 v%d, 16, v%d' % (r, r))
    a('v_mov_b32 v%d, v%d' % (MB, MEAN)); rnd_bf(MB)
    rnd_bf(VAR)
    a('v_add_f32 v%d, 0x%08x, v%d' % (VAR, f2u(1e-5), VAR)); rnd_bf(VAR)
    a('v_sqrt_f32 v%d, v%d' % (VAR, VAR)); rnd_bf(VAR)
    a('v_rcp_f32 v%d, v%d' % (RS, VAR))
    XN = V_BF + 16
    for k in range(8):
        a('v_sub_f32 v%d, v%d, v%d' % (F+2*k, F+2*k, MB))
        a('v_sub_f32 v%d, v%d, v%d' % (F+2*k+1, F+2*k+1, MB))
    for k in range(8):
        a('v_cvt_pk_bf16_f32 v%d, v%d, v%d' % (T+k, F+2*k, F+2*k+1))
    for k in range(8):
        a('v_lshlrev_b32 v%d, 16, v%d' % (F+2*k, T+k))
        a('v_and_b32 v%d, s%d, v%d' % (F+2*k+1, S_MASK, T+k))
    for k in range(16):
        a('v_mul_f32 v%d, v%d, v%d' % (F+k, F+k, RS))
    for k in range(8):
        a('v_cvt_pk_bf16_f32 v%d, v%d, v%d' % (XN+k, F+2*k, F+2*k+1))
    a('ds_write_b128 v%d, v[%d:%d]' % (V_T3, XN, XN+3))
    a('ds_write_b128 v%d, v[%d:%d] offset:512' % (V_T3, XN+4, XN+7))
    a('s_waitcnt lgkmcnt(0)')
    a('s_barrier')
    AF = V_S
    a('ds_read_b128 v[%d:%d], v%d' % (AF, AF+3, V_QF))
    stamp(3)

    nk = NK0
    for p in range(4):
        a.wait_vm(W_T[2*p+1])
        for m in range(4):
            for e in range(2):
                j = 2*m + e
                a('v_perm_b32 v%d, v%d, v%d, s%d' % (V_BF + 4*j + p, V_VB + 4*(2*p+1) + m, V_VB + 4*(2*p) + m, S_PHI if e else S_PLO))
        if nk < 16: issue_K(nk); nk += 1
    a('s_waitcnt lgkmcnt(0)')
    for j in range(8):
        a('v_mfma_f32_16x16x32_bf16 v[%d:%d], v[%d:%d], v[%d:%d], 0' % (V_ACC+4*j, V_ACC+4*j+3, AF, AF+3, V_BF+4*j, V_BF+4*j+3))
    while nk < NK0 + win: issue_K(nk); nk += 1
    a.wait_vm(tnonce)
    a('s_mov_b32 s%d, 20000' % S_CNT)
    a('L_nonce:')
    a('v_readfirstlane_b32 s%d, v%d' % (S_TAG, V_NONCE))
    a('s_cmp_lg_u32 s%d, 0' % S_TAG)
    a('s_cbranch_scc1 L_nonce_ok')
    a('s_sub_u32 s%d, s%d, 1' % (S_CNT, S_CNT))
    a('s_cbranch_scc1 L_nonce_ok')
    a('v_mov_b32 v%d, 0' % V_T2)
    a('buffer_load_dword v%d, v%d, s[%d:%d], 0 offen sc1' % (V_NONCE, V_T2, SRD_DBG, SRD_DBG+3))
    a('s_waitcnt vmcnt(0)')
    a('s_branch L_nonce')
    a('L_nonce_ok:')
    a('s_xor_b32 s%d, s%d, 0x5bd1e995' % (S_TAG+1, S_TAG))
    a('v_mov_b32 v%d, s%d' % (V_GR+2, S_TAG))
    a('v_mov_b32 v%d, s%d' % (V_GR+3, S_TAG+1))
    a('v_mov_b32 v%d, s%d' % (V_OG+3, S_TAG))

    def red_publish(pub_sreg, tmpbase):
        a('s_mov_b32 exec_lo, 0x00ff00ff')
        a('s_mov_b32 exec_hi, 0xff00ff00')
        for j in range(8):
            a('ds_write_b128 v%d, v[%d:%d] offset:%d' % (V_REDW, V_ACC+4*j, V_ACC+4*j+3, j*1024))
        a('s_mov_b64 exec, -1')
        a('s_waitcnt lgkmcnt(0)')
        a('s_barrier')
        R = tmpbase
        a('v_add_u32 v%d, 1024, v%d' % (V_T, V_REDR))
        for p in range(4):
            a('ds_read2_b32 v[%d:%d], v%d offset0:%d offset1:%d' % (R+2*p, R+2*p+1, V_REDR, 64*p, 64*p+32))
        for p in range(4):
            a('ds_read2_b32 v[%d:%d], v%d offset0:%d offset1:%d' % (R+8+2*p, R+8+2*p+1, V_T, 64*p, 64*p+32))
        a('s_waitcnt lgkmcnt(4)')
        for k in range(4): a('v_add_f32 v%d, v%d, v%d' % (R+2*k, R+2*k, R+2*k+1))
        a('v_add_f32 v%d, v%d, v%d' % (R, R, R+2))
        a('v_add_f32 v%d, v%d, v%d' % (R+4, R+4, R+6))
        a('v_add_f32 v%d, v%d, v%d' % (V_GR, R, R+4))
        a('s_waitcnt lgkmcnt(0)')
        R2 = R + 8
        for k in range(4): a('v_add_f32 v%d, v%d, v%d' % (R2+2*k, R2+2*k, R2+2*k+1))
        a('v_add_f32 v%d, v%d, v%d' % (R2, R2, R2+2))
        a('v_add_f32 v%d, v%d, v%d' % (R2+4, R2+4, R2+6))
        a('v_add_f32 v%d, v%d, v%d' % (V_GR+1, R2, R2+4))
        return a.vm('buffer_store_dwordx4 v[%d:%d], v%d, s[%d:%d], s%d offen sc1' % (V_GR, V_GR+3, V_PUB, SRD_WS, SRD_WS+3, pub_sreg))
    red_publish(S_PUB, V_BF)
    stamp(4)

    while nk < 16:
        a.wait_vm(K_T[nk - win])
        issue_K(nk); nk += 1
    QG0 = V_BF; QG1 = V_BF + 4
    a('v_lshrrev_b32 v%d, 5, v%d' % (V_T, V_L))
    a('s_lshl_b32 s%d, s%d, 1' % (S_T4, S_W))
    a('v_add_u32 v%d, s%d, v%d' % (V_T, S_T4, V_T))
    a('v_and_b32 v%d, 31, v%d' % (V_T1, V_L))
    a('v_lshlrev_b32 v%d, 13, v%d' % (V_T2, V_T))
    a('v_lshl_add_u32 v%d, v%d, 4, v%d' % (V_AOFF, V_T1, V_T2))
    a('v_lshlrev_b32 v%d, 7, v%d' % (V_T, V_T))
    a('v_and_b32 v%d, 7, v%d' % (V_T2, V_L))
    a('v_lshl_add_u32 v%d, v%d, 4, v%d' % (V_T, V_T2, V_T))
    a('v_bfe_u32 v%d, v%d, 3, 2' % (V_T2, V_L))
    a('v_lshl_add_u32 v%d, v%d, 2, v%d' % (V_T3, V_T2, V_T))
    a('v_add_u32 v%d, %d, v%d' % (V_T3, L_Q, V_T3))
    a('s_add_u32 s%d, s%d, 4096' % (S_T7, S_QG))
    a.wait_vm(K_T[16 - win // 2 - 1] if win > 1 else K_T[15])
    def q_issue():
        t0 = a.vm('buffer_load_dwordx4 v[%d:%d], v%d, s[%d:%d], s%d offen sc1' % (QG0, QG0+3, V_AOFF, SRD_WS, SRD_WS+3, S_QG))
        t1 = a.vm('buffer_load_dwordx4 v[%d:%d], v%d, s[%d:%d], s%d offen sc1' % (QG1, QG1+3, V_AOFF, SRD_WS, SRD_WS+3, S_T7))
        return t1
    tq = q_issue()
    HG = V_ACC
    a('v_and_b32 v%d, 7, v%d' % (V_T, V_L))
    a('v_lshlrev_b32 v%d, 9, v%d' % (V_T, V_T))
    a('v_lshrrev_b32 v%d, 4, v%d' % (V_T1, V_L))
    a('v_lshl_add_u32 v%d, v%d, 7, v%d' % (V_T, V_T1, V_T))
    a('v_bfe_u32 v%d, v%d, 3, 1' % (V_T1, V_L))
    a('v_lshl_add_u32 v%d, v%d, 4, v%d' % (V_T, V_T1, V_T))
    a('s_lshl_b32 s%d, s%d, 5' % (S_T4, S_W))
    a('v_add_u32 v%d, s%d, v%d' % (V_T1, S_T4, V_T))
    nv = 0
    NV0 = win
    for kk in range(NV0): issue_V(kk); nv += 1
    stamp(5)
    a.wait_vm(tq)
    a('s_mov_b32 s%d, 20000' % S_CNT)
    a('L_q:')
    a('v_cmp_eq_u64 vcc, s[%d:%d], v[%d:%d]' % (S_TAG, S_TAG+1, QG0+2, QG0+3))
    a('v_cmp_eq_u64 s[%d:%d], s[%d:%d], v[%d:%d]' % (S_T0, S_T0+1, S_TAG, S_TAG+1, QG1+2, QG1+3))
    a('s_and_b64 vcc, vcc, s[%d:%d]' % (S_T0, S_T0+1))
    a('s_cmp_eq_u64 vcc, -1')
    a('s_cbranch_scc1 L_q_ok')
    a('s_sub_u32 s%d, s%d, 1' % (S_CNT, S_CNT))
    a('s_cbranch_scc1 L_q_ok')
    a('buffer_load_dwordx4 v[%d:%d], v%d, s[%d:%d], s%d offen sc1' % (QG0, QG0+3, V_AOFF, SRD_WS, SRD_WS+3, S_QG))
    a('buffer_load_dwordx4 v[%d:%d], v%d, s[%d:%d], s%d offen sc1' % (QG1, QG1+3, V_AOFF, SRD_WS, SRD_WS+3, S_T7))
    a('s_waitcnt vmcnt(0)')
    a('s_branch L_q')
    a('L_q_ok:')
    a('v_add_f32 v%d, v%d, v%d' % (QG0, QG0, QG1))
    a('v_add_f32 v%d, v%d, v%d' % (QG0+1, QG0+1, QG1+1))
    a('v_cvt_pk_bf16_f32 v%d, v%d, v%d' % (QG0, QG0, QG0+1))
    a('ds_write_b32 v%d, v%d' % (V_T3, QG0))
    a('v_and_b32 v%d, 3, v%d' % (V_T, V_L))
    a('v_lshlrev_b32 v%d, 8, v%d' % (V_T, V_T))
    a('v_lshrrev_b32 v%d, 4, v%d' % (V_T2, V_L))
    a('v_lshl_add_u32 v%d, v%d, 6, v%d' % (V_T, V_T2, V_T))
    a('v_bfe_u32 v%d, v%d, 2, 2' % (V_T2, V_L))
    a('v_lshl_add_u32 v%d, v%d, 4, v%d' % (V_T, V_T2, V_T))
    a('s_waitcnt lgkmcnt(0)')
    a('s_barrier')
    a('ds_read_b128 v[%d:%d], v%d offset:%d' % (V_QF, V_QF+3, V_T, L_Q))
    th = []
    a('s_add_u32 s40, s%d, 4096' % (S_HG))
    a('s_add_u32 s41, s%d, %d' % (S_HG, 56*4096))
    a('s_add_u32 s44, s%d, %d' % (S_HG, 57*4096))
    HG2 = V_WO
    hs = [S_HG, 40, 41, 44]
    for k in range(4):
        th.append(a.vm('buffer_load_dwordx4 v[%d:%d], v%d, s[%d:%d], s%d offen sc1' % (HG2+4*k, HG2+4*k+3, V_T1, SRD_WS, SRD_WS+3, hs[k])))
    stamp(6)
    a('s_waitcnt lgkmcnt(0)')
    D = V_BF
    for kk in range(16):
        a('v_mfma_f32_16x16x32_bf16 v[%d:%d], a[%d:%d], v[%d:%d], 0' % (D+4*kk, D+4*kk+3, 4*kk, 4*kk+3, V_QF, V_QF+3))
    for t in range(4):
        for st in range(3):
            c = (t + 1 + st) & 3
            n = 4 * ((t - c) % 4)
            for m in range(4):
                kk = 4*m + t
                s1 = (D + 4*kk + t) if st == 0 else (V_S + m)
                a('v_add_f32_dpp v%d, v%d, v%d row_ror:%d row_mask:0xf bank_mask:0x%x' % (V_S+m, D+4*kk+c, s1, n, 1 << t))
    MX = V_T
    a('v_max3_f32 v%d, v%d, v%d, v%d' % (MX, V_S, V_S+1, V_S+2))
    a('v_max_f32 v%d, v%d, v%d' % (MX, MX, V_S+3))
    def full_reduce(r, tmp, op):
        for n in (4, 8):
            a('%s_dpp v%d, v%d, v%d row_ror:%d row_mask:0xf bank_mask:0xf' % (op, r, r, r, n))
        a('v_mov_b32 v%d, v%d' % (tmp, r))
        a('v_permlane16_swap_b32 v%d, v%d' % (r, tmp))
        a('%s v%d, v%d, v%d' % (op, r, r, tmp))
        a('v_mov_b32 v%d, v%d' % (tmp, r))
        a('v_permlane32_swap_b32 v%d, v%d' % (r, tmp))
        a('%s v%d, v%d, v%d' % (op, r, r, tmp))
    full_reduce(MX, V_T2, 'v_max_f32')
    a('v_and_b32 v%d, 3, v%d' % (V_T2, V_L))
    a('v_lshlrev_b32 v%d, 4, v%d' % (V_T2, V_T2))
    a('s_lshl_b32 s%d, s%d, 2' % (S_T4, S_W))
    a('v_add_u32 v%d, s%d, v%d' % (V_T3, S_T4, V_T2))
    a('s_mov_b64 exec, 15')
    a('ds_write_b32 v%d, v%d offset:%d' % (V_T3, MX, L_MAX))
    a('s_mov_b64 exec, -1')
    a('s_waitcnt lgkmcnt(0)')
    a('s_barrier')
    MM = V_BF
    a('ds_read_b128 v[%d:%d], v%d offset:%d' % (MM, MM+3, V_T2, L_MAX))
    a('v_bfe_u32 v%d, v%d, 3, 2' % (V_RL, V_L))
    a('v_lshlrev_b32 v%d, 4, v%d' % (V_RL, V_RL))
    a('ds_read_b128 v[%d:%d], v%d offset:%d' % (MM+4, MM+7, V_RL, L_MAX))
    a('s_waitcnt lgkmcnt(0)')
    a('v_max3_f32 v%d, v%d, v%d, v%d' % (MM, MM, MM+1, MM+2))
    a('v_max_f32 v%d, v%d, v%d' % (MM, MM, MM+3))
    a('v_mul_f32 v%d, s%d, v%d' % (MM, S_C, MM))
    a('v_max3_f32 v%d, v%d, v%d, v%d' % (MM+4, MM+4, MM+5, MM+6))
    a('v_max_f32 v%d, v%d, v%d' % (MM+4, MM+4, MM+7))
    a('v_mul_f32 v%d, s%d, v%d' % (V_OG+2, S_C, MM+4))
    for m in range(4):
        a('v_fma_f32 v%d, v%d, s%d, -v%d' % (V_S+m, V_S+m, S_C, MM))
    for m in range(4):
        a('v_exp_f32 v%d, v%d' % (V_S+m, V_S+m))
    a('v_add_f32 v%d, v%d, v%d' % (MX, V_S, V_S+1))
    a('v_add_f32 v%d, v%d, v%d' % (MM+1, V_S+2, V_S+3))
    a('v_add_f32 v%d, v%d, v%d' % (MX, MX, MM+1))
    full_reduce(MX, MM+1, 'v_add_f32')
    a('s_mov_b64 exec, 15')
    a('ds_write_b32 v%d, v%d offset:%d' % (V_T3, MX, L_LS))
    a('s_mov_b64 exec, -1')
    PF = V_QF
    for m in range(4):
        a('v_mov_b32_dpp v%d, v%d row_ror:12 row_mask:0xf bank_mask:0xf' % (MM+4+m, V_S+m))
    for m in range(4):
        a('v_cvt_pk_bf16_f32 v%d, v%d, v%d' % (PF+2*m, V_S+m, MM+4+m))
    for m in range(4):
        a('v_mov_b32_dpp v%d, v%d row_ror:8 row_mask:0xf bank_mask:0xf' % (PF+2*m+1, PF+2*m))
    a('s_waitcnt lgkmcnt(0)')
    a('s_barrier')
    a('ds_read_b128 v[%d:%d], v%d offset:%d' % (MM, MM+3, V_RL, L_LS))
    a('s_waitcnt lgkmcnt(0)')
    a('v_add_f32 v%d, v%d, v%d' % (MM, MM, MM+1))
    a('v_add_f32 v%d, v%d, v%d' % (MM+2, MM+2, MM+3))
    a('v_add_f32 v%d, v%d, v%d' % (MM, MM, MM+2))
    a('v_log_f32 v%d, v%d' % (MM+1, MM))
    a('v_rcp_f32 v%d, v%d' % (V_RL, MM))
    a('v_add_f32 v%d, v%d, v%d' % (V_OG+2, V_OG+2, MM+1))
    stamp(7)

    a.wait_vm(th[3])
    a('s_mov_b32 s%d, 20000' % S_CNT)
    a('L_h:')
    a('v_cmp_eq_u64 vcc, s[%d:%d], v[%d:%d]' % (S_TAG, S_TAG+1, HG2+2, HG2+3))
    for k in range(1, 4):
        a('v_cmp_eq_u64 s[%d:%d], s[%d:%d], v[%d:%d]' % (S_T0, S_T0+1, S_TAG, S_TAG+1, HG2+4*k+2, HG2+4*k+3))
        a('s_and_b64 vcc, vcc, s[%d:%d]' % (S_T0, S_T0+1))
    a('s_cmp_eq_u64 vcc, -1')
    a('s_cbranch_scc1 L_h_ok')
    a('s_sub_u32 s%d, s%d, 1' % (S_CNT, S_CNT))
    a('s_cbranch_scc1 L_h_ok')
    for k in range(4):
        a('buffer_load_dwordx4 v[%d:%d], v%d, s[%d:%d], s%d offen sc1' % (HG2+4*k, HG2+4*k+3, V_T1, SRD_WS, SRD_WS+3, hs[k]))
    a('s_waitcnt vmcnt(0)')
    a('s_branch L_h')
    a('L_h_ok:')
    GA = V_BF; UP = V_BF+2; TT = V_BF+4
    for e in range(2):
        a('v_add_f32 v%d, v%d, v%d' % (GA+e, HG2+e, HG2+4+e))
        a('v_add_f32 v%d, v%d, v%d' % (UP+e, HG2+8+e, HG2+12+e))
    def rnd_pair(r0, r1, tmp):
        a('v_cvt_pk_bf16_f32 v%d, v%d, v%d' % (tmp, r0, r1))
        a('v_lshlrev_b32 v%d, 16, v%d' % (r0, tmp))
        a('v_and_b32 v%d, s%d, v%d' % (r1, S_MASK, tmp))
    rnd_pair(GA, GA+1, TT); rnd_pair(UP, UP+1, TT+1)
    k1 = -2.0 * 1.4426950408889634 * 0.7978845608028654
    k3 = k1 * 0.044715
    a('s_mov_b32 s%d, 0x%08x' % (S_T4, f2u(k1)))
    a('s_mov_b32 s%d, 0x%08x' % (S_T5, f2u(k3)))
    for e in range(2):
        a('v_mul_f32 v%d, v%d, v%d' % (TT+2+e, GA+e, GA+e))
        a('v_mov_b32 v%d, s%d' % (TT+4+e, S_T4))
        a('v_fma_f32 v%d, v%d, s%d, v%d' % (TT+2+e, TT+2+e, S_T5, TT+4+e))
        a('v_mul_f32 v%d, v%d, v%d' % (TT+2+e, TT+2+e, GA+e))
        a('v_exp_f32 v%d, v%d' % (TT+2+e, TT+2+e))
        a('v_add_f32 v%d, 1.0, v%d' % (TT+2+e, TT+2+e))
        a('v_rcp_f32 v%d, v%d' % (TT+2+e, TT+2+e))
        a('v_mul_f32 v%d, v%d, v%d' % (GA+e, GA+e, TT+2+e))
    rnd_pair(GA, GA+1, TT)
    for e in range(2):
        a('v_mul_f32 v%d, v%d, v%d' % (GA+e, GA+e, UP+e))
    a('v_cvt_pk_bf16_f32 v%d, v%d, v%d' % (V_HA, GA, GA+1))
    a('v_mov_b32 v%d, 0' % (V_HA+1))

    WO_T = []; WD_T = []
    def issue_WO(kk):
        WO_T.append(a.vm('buffer_load_dwordx4 v[%d:%d], v%d, s[%d:%d], s%d offen offset:%d nt' % (V_WO+4*kk, V_WO+4*kk+3, V_WOOFF, SRD_WO, SRD_WO+3, S_WO, kk*1024)))
    def issue_WD(kk):
        WD_T.append(a.vm('buffer_load_dwordx4 v[%d:%d], v%d, s[%d:%d], s%d offen offset:%d nt' % (V_WD+4*kk, V_WD+4*kk+3, V_WDOFF, SRD_WD, SRD_WD+3, S_WD, kk*1024)))
    rest = [('V', k) for k in range(nv, 16)] + [('WD', 0), ('WD', 1)] + [('WO', k) for k in range(4)]
    def issue_next(n):
        for _ in range(n):
            if not rest: return
            kind, k = rest.pop(0)
            if kind == 'V': issue_V(k)
            elif kind == 'WD': issue_WD(k)
            else: issue_WO(k)
    V_OPR = V_AOFF
    a('v_and_b32 v%d, 1, v%d' % (V_T, V_L))
    a('v_mul_u32_u24 v%d, %d, v%d' % (V_T, 4*OP_J, V_T))
    a('v_bfe_u32 v%d, v%d, 1, 2' % (V_T2, V_L))
    a('v_lshl_add_u32 v%d, v%d, 4, v%d' % (V_T, V_T2, V_T))
    a('v_bfe_u32 v%d, v%d, 3, 2' % (V_T2, V_L))
    a('v_lshl_add_u32 v%d, v%d, 2, v%d' % (V_T, V_T2, V_T))
    a('s_lshl_b32 s%d, s%d, 6' % (S_T4, S_W))
    a('s_add_u32 s%d, s%d, %d' % (S_T4, S_T4, L_OP))
    a('v_add_u32 v%d, s%d, v%d' % (V_OPR, S_T4, V_T))
    V_OPW = V_T3
    a('s_lshl_b32 s%d, s%d, 8' % (S_T4, S_W))
    a('s_add_u32 s%d, s%d, %d' % (S_T4, S_T4, L_OP))
    a('v_lshlrev_b32 v%d, 4, v%d' % (V_OPW, V_L))
    a('v_add_u32 v%d, s%d, v%d' % (V_OPW, S_T4, V_OPW))
    V_OST = V_T1
    a('v_lshlrev_b32 v%d, 9, v%d' % (V_OST, V_T2))
    a('v_and_b32 v%d, 7, v%d' % (V_T, V_L))
    a('v_lshl_add_u32 v%d, v%d, 4, v%d' % (V_OST, V_T, V_OST))
    a('s_lshl_b32 s%d, s%d, 7' % (S_T4, S_W))
    a('v_add_u32 v%d, s%d, v%d' % (V_OST, S_T4, V_OST))
    V_H2 = V_KOFF
    a('v_and_b32 v%d, 7, v%d' % (V_H2, V_L))
    a('v_lshlrev_b32 v%d, 16, v%d' % (V_H2, V_H2))
    a('v_bfe_u32 v%d, v%d, 3, 1' % (V_T, V_L))
    a('v_lshl_add_u32 v%d, v%d, 6, v%d' % (V_H2, V_T, V_H2))
    a('v_lshrrev_b32 v%d, 4, v%d' % (V_T, V_L))
    a('v_lshl_add_u32 v%d, v%d, 4, v%d' % (V_H2, V_T, V_H2))
    a('s_lshl_b32 s%d, s%d, 7' % (S_T4, S_W))
    a('v_add_u32 v%d, s%d, v%d' % (V_H2, S_T4, V_H2))
    for Tg in range(2):
        for p in range(4):
            kk0 = 8*Tg + 2*p
            a.wait_vm(V_Tk[kk0+1])
            for m in range(4):
                for e in range(2):
                    j = 2*m + e
                    a('v_perm_b32 v%d, v%d, v%d, s%d' % (V_BF + 4*j + p, vreg(kk0+1) + m, vreg(kk0) + m, S_PHI if e else S_PLO))
            issue_next(2)
        for j in range(8):
            cs = '0' if Tg == 0 else 'v[%d:%d]' % (V_ACC+4*j, V_ACC+4*j+3)
            a('v_mfma_f32_16x16x32_bf16 v[%d:%d], v[%d:%d], v[%d:%d], %s' % (V_ACC+4*j, V_ACC+4*j+3, PF+4*Tg, PF+4*Tg+3, V_BF+4*j, V_BF+4*j+3, cs))
    issue_next(99)
    stamp(8)
    a('s_mov_b64 exec, 0xffff')
    for j in range(8):
        a('ds_write_b128 v%d, v[%d:%d] offset:%d' % (V_OPW, V_ACC+4*j, V_ACC+4*j+3, j*OP_J))
    a('s_mov_b64 exec, -1')
    a('s_waitcnt lgkmcnt(0)')
    a('s_barrier')
    R = V_VA
    for jj in range(4):
        for wp in range(4):
            a('ds_read_b32 v%d, v%d offset:%d' % (R+4*jj+wp, V_OPR, jj*OP_J + wp*256))
    for jj in range(4):
        a('s_waitcnt lgkmcnt(%d)' % (12 - 4*jj))
        a('v_add_f32 v%d, v%d, v%d' % (R+4*jj, R+4*jj, R+4*jj+1))
        a('v_add_f32 v%d, v%d, v%d' % (R+4*jj+2, R+4*jj+2, R+4*jj+3))
        a('v_add_f32 v%d, v%d, v%d' % (R+4*jj, R+4*jj, R+4*jj+2))
        a('v_mul_f32 v%d, v%d, v%d' % (R+4*jj, R+4*jj, V_RL))
    a('v_cvt_pk_bf16_f32 v%d, v%d, v%d' % (V_OG, R, R+4))
    a('v_cvt_pk_bf16_f32 v%d, v%d, v%d' % (V_OG+1, R+8, R+12))
    a('s_mov_b64 exec, 0xffffffff')
    a.vm('buffer_store_dwordx4 v[%d:%d], v%d, s[%d:%d], s%d offen sc1' % (V_OG, V_OG+3, V_OST, SRD_WS, SRD_WS+3, S_PUBO))
    a('s_mov_b64 exec, -1')
    stamp(9)

    BF2 = V_BF
    for j in range(8):
        a('v_mov_b32 v%d, 0' % (BF2 + 2*j + 1))
    a.wait_vm(WD_T[1])
    for m in range(4):
        for e in range(2):
            j = 2*m + e
            a('v_perm_b32 v%d, v%d, v%d, s%d' % (BF2 + 2*j, V_WD + 4 + m, V_WD + m, S_PHI if e else S_PLO))
    for j in range(8):
        a('v_mfma_f32_16x16x16_bf16 v[%d:%d], v[%d:%d], v[%d:%d], 0' % (V_ACC+4*j, V_ACC+4*j+3, V_HA, V_HA+1, BF2+2*j, BF2+2*j+1))
    red_publish(S_PUBG, V_VB)
    a('v_add_u32 v%d, 16384, v%d' % (V_REDW, V_REDW))
    a('v_add_u32 v%d, 16384, v%d' % (V_REDR, V_REDR))
    G2 = V_VA
    a('s_add_u32 s%d, s%d, 16384' % (S_T4, S_H2))
    a('s_add_u32 s%d, s%d, 32768' % (S_T5, S_H2))
    a('s_add_u32 s%d, s%d, 49152' % (S_T6, S_H2))
    gs = [S_H2, S_T4, S_T5, S_T6]
    tg = None
    for s in range(4):
        tg = a.vm('buffer_load_dwordx4 v[%d:%d], v%d, s[%d:%d], s%d offen sc1' % (G2+4*s, G2+4*s+3, V_H2, SRD_WS, SRD_WS+3, gs[s]))
    a.wait_vm(WO_T[3])
    for p in range(2):
        for m in range(4):
            for e in range(2):
                j = 2*m + e
                a('v_perm_b32 v%d, v%d, v%d, s%d' % (V_BF + 2*j + p, V_WO + 4*(2*p+1) + m, V_WO + 4*(2*p) + m, S_PHI if e else S_PLO))
    a.wait_vm(tg)
    a('s_mov_b32 s%d, 200000' % S_CNT)
    a('L_g2:')
    a('v_cmp_eq_u32 vcc, s%d, v%d' % (S_TAG, G2+3))
    for s in range(1, 4):
        a('v_cmp_eq_u32 s[%d:%d], s%d, v%d' % (S_T0, S_T0+1, S_TAG, G2+4*s+3))
        a('s_and_b64 vcc, vcc, s[%d:%d]' % (S_T0, S_T0+1))
    a('s_cmp_eq_u64 vcc, -1')
    a('s_cbranch_scc1 L_g2_ok')
    a('s_sub_u32 s%d, s%d, 1' % (S_CNT, S_CNT))
    a('s_cbranch_scc1 L_g2_ok')
    for s in range(4):
        a('buffer_load_dwordx4 v[%d:%d], v%d, s[%d:%d], s%d offen sc1' % (G2+4*s, G2+4*s+3, V_H2, SRD_WS, SRD_WS+3, gs[s]))
    a('s_waitcnt vmcnt(0)')
    a('s_branch L_g2')
    a('L_g2_ok:')
    stamp(10)
    E = V_VA + 16
    a('v_max3_f32 v%d, v%d, v%d, v%d' % (E+4, G2+2, G2+6, G2+10))
    a('v_max_f32 v%d, v%d, v%d' % (E+4, E+4, G2+14))
    for s in range(4): a('v_sub_f32 v%d, v%d, v%d' % (E+s, G2+4*s+2, E+4))
    for s in range(4): a('v_exp_f32 v%d, v%d' % (E+s, E+s))
    a('v_add_f32 v%d, v%d, v%d' % (E+4, E, E+1))
    a('v_add_f32 v%d, v%d, v%d' % (E+5, E+2, E+3))
    a('v_add_f32 v%d, v%d, v%d' % (E+4, E+4, E+5))
    a('v_rcp_f32 v%d, v%d' % (E+4, E+4))
    O4 = E + 8
    U = E + 12
    for s in range(4):
        a('v_lshlrev_b32 v%d, 16, v%d' % (U, G2+4*s))
        a('v_and_b32 v%d, s%d, v%d' % (U+1, S_MASK, G2+4*s))
        a('v_lshlrev_b32 v%d, 16, v%d' % (U+2, G2+4*s+1))
        a('v_and_b32 v%d, s%d, v%d' % (U+3, S_MASK, G2+4*s+1))
        for d in range(4):
            if s == 0: a('v_mul_f32 v%d, v%d, v%d' % (O4+d, U+d, E))
            else: a('v_fmac_f32 v%d, v%d, v%d' % (O4+d, U+d, E+s))
    for d in range(4): a('v_mul_f32 v%d, v%d, v%d' % (O4+d, O4+d, E+4))
    AO = V_HA
    a('v_cvt_pk_bf16_f32 v%d, v%d, v%d' % (AO, O4, O4+1))
    a('v_cvt_pk_bf16_f32 v%d, v%d, v%d' % (AO+1, O4+2, O4+3))
    for j in range(8):
        a('v_mfma_f32_16x16x16_bf16 v[%d:%d], v[%d:%d], v[%d:%d], 0' % (V_ACC+4*j, V_ACC+4*j+3, AO, AO+1, V_BF+2*j, V_BF+2*j+1))
    red_publish(S_PUBS, V_VB)
    a('s_cmp_lg_u32 s%d, 0' % S_W)
    a('s_cbranch_scc1 L_fin')
    a('v_lshrrev_b32 v%d, 3, v%d' % (V_T, V_L))
    a('v_lshlrev_b32 v%d, 12, v%d' % (V_T, V_T))
    a('v_and_b32 v%d, 7, v%d' % (V_T2, V_L))
    a('v_lshl_add_u32 v%d, v%d, 4, v%d' % (V_T, V_T2, V_T))
    a('s_and_b32 s%d, s%d, 7' % (S_T4, S_R))
    a('s_lshl_b32 s%d, s%d, 17' % (S_T4, S_T4))
    a('s_lshl_b32 s%d, s%d, 9' % (S_T5, S_H))
    a('s_add_u32 s%d, s%d, s%d' % (S_T4, S_T4, S_T5))
    a('s_lshr_b32 s%d, s%d, 3' % (S_T5, S_R))
    a('s_lshl_b32 s%d, s%d, 7' % (S_T5, S_T5))
    a('s_add_u32 s%d, s%d, s%d' % (S_T4, S_T4, S_T5))
    GS = V_BF
    GG = V_BF + 16
    so = [S_K, S_V, S_A, S_WO]; go = [S_WD, S_QG, S_HG, S_H2]
    for i in range(4):
        a('s_add_u32 s%d, s%d, 0x%x' % (so[i], S_T4, WS_S + i*8*4096))
        a('s_add_u32 s%d, s%d, 0x%x' % (go[i], S_T4, WS_G + i*8*4096))
    a('v_mov_b32 v%d, 0' % (GG+12))
    a('v_mov_b32 v%d, 0' % (GG+13))
    a('v_mov_b32 v%d, s%d' % (GG+14, S_TAG))
    a('v_mov_b32 v%d, s%d' % (GG+15, S_TAG+1))
    def g_issue():
        for i in range(3):
            a('buffer_load_dwordx4 v[%d:%d], v%d, s[%d:%d], s%d offen sc1' % (GG+4*i, GG+4*i+3, V_T, SRD_WS, SRD_WS+3, go[i]))
        a('s_mov_b64 exec, 0xffffffff')
        a('buffer_load_dwordx4 v[%d:%d], v%d, s[%d:%d], s%d offen sc1' % (GG+12, GG+15, V_T, SRD_WS, SRD_WS+3, go[3]))
        a('s_mov_b64 exec, -1')
    def s_issue():
        for i in range(4):
            a('buffer_load_dwordx4 v[%d:%d], v%d, s[%d:%d], s%d offen sc1' % (GS+4*i, GS+4*i+3, V_T, SRD_WS, SRD_WS+3, so[i]))
    def chk(base, lab_ok):
        a('v_cmp_eq_u64 vcc, s[%d:%d], v[%d:%d]' % (S_TAG, S_TAG+1, base+2, base+3))
        for i in range(1, 4):
            a('v_cmp_eq_u64 s[%d:%d], s[%d:%d], v[%d:%d]' % (S_T0, S_T0+1, S_TAG, S_TAG+1, base+4*i+2, base+4*i+3))
            a('s_and_b64 vcc, vcc, s[%d:%d]' % (S_T0, S_T0+1))
        a('s_cmp_eq_u64 vcc, -1')
        a('s_cbranch_scc1 %s' % lab_ok)
    a('s_mov_b32 s%d, 200000' % S_CNT)
    a('L_f1:')
    g_issue()
    a('s_waitcnt vmcnt(0)')
    chk(GG, 'L_f1_ok')
    a('s_sub_u32 s%d, s%d, 1' % (S_CNT, S_CNT))
    a('s_cbranch_scc0 L_f1')
    a('L_f1_ok:')
    a('s_mov_b32 s%d, 200000' % S_CNT)
    a('L_f2:')
    s_issue()
    a('s_waitcnt vmcnt(0)')
    chk(GS, 'L_f2_ok')
    a('s_sub_u32 s%d, s%d, 1' % (S_CNT, S_CNT))
    a('s_cbranch_scc0 L_f2')
    a('L_f2_ok:')
    for base in (GS, GG):
        for e in range(2):
            a('v_add_f32 v%d, v%d, v%d' % (base+e, base+e, base+4+e))
            a('v_add_f32 v%d, v%d, v%d' % (base+8+e, base+8+e, base+12+e))
        for e in range(2):
            a('v_add_f32 v%d, v%d, v%d' % (base+e, base+e, base+8+e))
    vals = [GS, GS+1, GG, GG+1]
    tmps = [GS+4, GS+5, GS+6, GS+7]
    for r in vals:
        a('v_add_f32_dpp v%d, v%d, v%d row_ror:8 row_mask:0xf bank_mask:0xf' % (r, r, r))
    for r, t in zip(vals, tmps): a('v_mov_b32 v%d, v%d' % (t, r))
    for r, t in zip(vals, tmps): a('v_permlane16_swap_b32 v%d, v%d' % (r, t))
    for r, t in zip(vals, tmps): a('v_add_f32 v%d, v%d, v%d' % (r, r, t))
    for r, t in zip(vals, tmps): a('v_mov_b32 v%d, v%d' % (t, r))
    for r, t in zip(vals, tmps): a('v_permlane32_swap_b32 v%d, v%d' % (r, t))
    for r, t in zip(vals, tmps): a('v_add_f32 v%d, v%d, v%d' % (r, r, t))
    rnd_pair(GS, GS+1, GS+4)
    rnd_pair(GG, GG+1, GS+5)
    a('s_mov_b32 s%d, 0x%08x' % (S_T5, f2u(-1.4426950408889634)))
    for e in range(2):
        a('v_mul_f32 v%d, s%d, v%d' % (GS+8+e, S_T5, GG+e))
        a('v_exp_f32 v%d, v%d' % (GS+8+e, GS+8+e))
        a('v_add_f32 v%d, 1.0, v%d' % (GS+8+e, GS+8+e))
        a('v_rcp_f32 v%d, v%d' % (GS+8+e, GS+8+e))
        a('v_mul_f32 v%d, v%d, v%d' % (GG+e, GG+e, GS+8+e))
    rnd_pair(GG, GG+1, GS+5)
    for e in range(2):
        a('v_mul_f32 v%d, v%d, v%d' % (GS+e, GS+e, GG+e))
    rnd_pair(GS, GS+1, GS+4)
    a('v_lshlrev_b32 v%d, 16, v%d' % (GS+8, V_XF))
    a('v_and_b32 v%d, s%d, v%d' % (GS+9, S_MASK, V_XF))
    for e in range(2):
        a('v_add_f32 v%d, v%d, v%d' % (GS+e, GS+e, GS+8+e))
    a('v_cvt_pk_bf16_f32 v%d, v%d, v%d' % (GS, GS, GS+1))
    if exp == 'loop':
        a('s_mov_b32 s%d, 1000' % S_CNT)
        a('L_exp:')
        for i in range(8): a('v_add_u32 v%d, v%d, v%d' % (GS+8, GS+8, GS+9))
        a('s_sub_u32 s%d, s%d, 1' % (S_CNT, S_CNT))
        a('s_cbranch_scc0 L_exp')
    if exp and exp.startswith('line'):
        for i in range(int(exp[4:])*128): a('v_add3_u32 v%d, v%d, v%d, v%d' % (GS+8, GS+8, GS+9, GS+10))
    if exp and exp.startswith('spin'):
        a('L_spin:')
        a('s_memrealtime s[%d:%d]' % (S_T0, S_T0+1))
        a('s_waitcnt lgkmcnt(0)')
        a('s_sub_u32 s%d, s%d, s%d' % (S_T0, S_T0, S_NONCE))
        a('s_cmp_lt_u32 s%d, %d' % (S_T0, int(exp[4:])*100))
        a('s_cbranch_scc1 L_spin')
    if exp == 'dbg':
        a('s_memrealtime s[%d:%d]' % (S_T0, S_T0+1))
        a('s_waitcnt lgkmcnt(0)')
        a('v_mov_b32 v%d, s%d' % (GS+8, S_T0))
        a('s_not_b32 s%d, s%d' % (S_T4, S_NONCE))
        a('v_mov_b32 v%d, s%d' % (GS+9, S_T4))
        a('v_mov_b32 v%d, 0' % (GS+10))
        a('s_mov_b64 exec, 1')
        a('buffer_atomic_umax v%d, v%d, s[%d:%d], 0 offen offset:4' % (GS+9, GS+10, SRD_DBG, SRD_DBG+3))
        a('buffer_atomic_umax v%d, v%d, s[%d:%d], 0 offen offset:8' % (GS+8, GS+10, SRD_DBG, SRD_DBG+3))
        a('s_mov_b64 exec, -1')
    a('s_mov_b64 exec, 0xff')
    a('buffer_store_dword v%d, v%d, s[%d:%d], 0 offen' % (GS, V_OUTOFF, SRD_OUT, SRD_OUT+3))
    a('s_mov_b64 exec, -1')
    a('L_fin:')
    if stamps:
        a('s_memrealtime s[%d:%d]' % (S_NONCE, S_NONCE+1))
        a('s_waitcnt lgkmcnt(0)')
        NS = 12
        a('s_lshl_b32 s%d, s2, 2' % S_T4)
        a('s_add_u32 s%d, s%d, s%d' % (S_T4, S_T4, S_W))
        a('s_mul_i32 s%d, s%d, %d' % (S_T4, S_T4, NS*8))
        a('s_add_u32 s%d, s%d, 0x%x' % (S_T4, S_T4, WS_STAMP))
        a('v_mov_b32 v%d, 0' % V_T2)
        a('s_mov_b64 exec, 1')
        for i in range(NS):
            sr = S_STAMP + 2*i if i < 11 else S_NONCE
            a('v_mov_b32 v%d, s%d' % (V_BF, sr))
            a('v_mov_b32 v%d, s%d' % (V_BF+1, sr+1))
            a('buffer_store_dwordx2 v[%d:%d], v%d, s[%d:%d], s%d offen offset:%d' % (V_BF, V_BF+1, V_T2, SRD_WS, SRD_WS+3, S_T4, i*8))
            a('s_waitcnt vmcnt(0)')
    a('L_end:')
    a('s_endpgm')
    body = a.finalize()
    txt = wrap(body, 256, 256, LDS_BYTES, NV + 64, 102, NV, stamps=(1024, 12) if stamps else None)
    open(fname, 'w').write(txt)
    return a

if __name__ == '__main__':
    a = gen(stamps=False, fname='main.s')
    print('nops inserted', a.nops, 'instrs', len(a.ins))
    gen(stamps=True, fname='main_st.s')
    for e in ('spin40', 'spin60'): gen(fname='exp_%s.s' % e, exp=e)
```
